```python
import torch

def _softmax(x, axis=-1):
    return torch.softmax(x, dim=axis)
def _gelu(x):
    return torch.nn.functional.gelu(x, approximate="tanh")
def _silu(x):
    return torch.nn.functional.silu(x)
def _sigmoid(x):
    return torch.sigmoid(x)
def _layernorm(x, axis=-1, eps=1e-5):
    m = x.mean(dim=axis, keepdim=True)
    v = x.var(dim=axis, keepdim=True, unbiased=False)
    return (x - m) / torch.sqrt(v + eps)
def _scatter_add(tgt, idx, src, axis=0):
    return tgt.clone().index_add_(axis, idx, src)
def _segment_sum(src, seg, n):
    out = torch.zeros((n,) + src.shape[1:], dtype=src.dtype)
    return out.index_add_(0, seg, src)
def _pad(x, pw):
    flat = tuple(v for pair in reversed(pw) for v in pair)
    return torch.nn.functional.pad(x, flat)

kernel_name = 'interleave_layers__spectral_fnet__dense_activation_relu__prompt'

def setup_inputs():

    _w = (lambda a: (lambda t: t.to(torch.bfloat16) if t.is_floating_point() else t)(torch.as_tensor(a)))
    def _A_setup():
        B, S, D = 1, 2048, 448
        ns = torch.arange(S)[:, None] * torch.arange(S)[None, :]
        nd = torch.arange(D)[:, None] * torch.arange(D)[None, :]
        Ws_re = torch.cos(-2.0 * torch.pi * ns / S).to(float)
        Ws_im = torch.sin(-2.0 * torch.pi * ns / S).to(float)
        Wd_re = torch.cos(-2.0 * torch.pi * nd / D).to(float)
        Wd_im = torch.sin(-2.0 * torch.pi * nd / D).to(float)
        return {
            "x": _w((lambda *s: torch.randn(*s, dtype=torch.bfloat16) * 0.05)(B, S, D)),
            "dft_seq_re": _w(Ws_re),
            "dft_seq_im": _w(Ws_im),
            "dft_hid_re": _w(Wd_re),
            "dft_hid_im": _w(Wd_im),
        }
    _A_in = _A_setup()

    def _B_setup():
        B, S, D, Dff = 1, 2048, 448, 1792
        return {
            "x": _w((lambda *s: torch.randn(*s, dtype=torch.bfloat16) * 0.05)(B, S, D)),
            "w1": _w((lambda *s: torch.randn(*s, dtype=torch.bfloat16) * 1.6)(D, Dff)),
            "w2": _w((lambda *s: torch.randn(*s, dtype=torch.bfloat16) * 1.6)(Dff, D)),
        }
    _B_in = _B_setup()

    return {
        "A_x": _A_in["x"],
        "A_dft_seq_re": _A_in["dft_seq_re"],
        "A_dft_seq_im": _A_in["dft_seq_im"],
        "A_dft_hid_re": _A_in["dft_hid_re"],
        "A_dft_hid_im": _A_in["dft_hid_im"],
        "B_x": _B_in["x"],
        "B_w1": _B_in["w1"],
        "B_w2": _B_in["w2"],
    }

def reference(A_x, A_dft_seq_re, A_dft_seq_im, A_dft_hid_re, A_dft_hid_im, B_x, B_w1, B_w2):
    def _A_ref(x, dft_seq_re, dft_seq_im, dft_hid_re, dft_hid_im):
        a = torch.einsum("bsd,ed->bse", x, dft_hid_re)
        b = torch.einsum("bsd,ed->bse", x, dft_hid_im)
        y = torch.einsum("ts,bse->bte", dft_seq_re, a) - torch.einsum("ts,bse->bte", dft_seq_im, b)
        return y

    def _B_ref(x, w1, w2):
        h = torch.einsum("bsd,df->bsf", x, w1)
        zero = torch.zeros_like(h)
        h = torch.maximum(h, zero)
        return torch.einsum("bsf,fd->bsd", h, w2)

    x = A_x
    x = x + _A_ref(_layernorm(x, axis=-1), A_dft_seq_re, A_dft_seq_im, A_dft_hid_re, A_dft_hid_im)
    x = x + _B_ref(_layernorm(x, axis=-1), B_w1, B_w2)
    x = x + _A_ref(_layernorm(x, axis=-1), A_dft_seq_re, A_dft_seq_im, A_dft_hid_re, A_dft_hid_im)
    x = x + _B_ref(_layernorm(x, axis=-1), B_w1, B_w2)
    return x
```

```python
import re

REG = re.compile(r'(?<![\w.])([vas])(?:(\d+)|\[(\d+):(\d+)\])(?![\w])')


def regs_of(tok):
    out = []
    for m in REG.finditer(tok):
        c = m.group(1)
        if m.group(2) is not None:
            out.append((c, int(m.group(2))))
        else:
            out += [(c, i) for i in range(int(m.group(3)), int(m.group(4)) + 1)]
    if re.search(r'\bvcc\b', tok):
        out += [('s', 'vcc')]
    if re.search(r'\bm0\b', tok):
        out += [('s', 'm0')]
    if re.search(r'\bexec\b', tok):
        out += [('s', 'exec')]
    return out


TRANS = ('v_exp_', 'v_log_', 'v_rcp_', 'v_rsq_', 'v_sqrt_', 'v_sin_', 'v_cos_')


class Ins:
    __slots__ = ('text', 'mn', 'cls', 'wr', 'rd', 'srcc', 'ab', 'passes', 'tok', 'extra', 'wide_store', 'ldsdma', 'dpp')

    def __init__(self, text, tok=None):
        self.text = text
        self.tok = tok
        self.extra = None
        t = text.split(';')[0].strip()
        sp = t.split(None, 1)
        mn = sp[0]
        self.mn = mn
        ops = [o.strip() for o in sp[1].split(',')] if len(sp) > 1 else []
        self.wr, self.rd, self.srcc, self.ab = set(), set(), set(), set()
        self.passes = 0
        self.wide_store = False
        self.ldsdma = False
        self.dpp = '_dpp' in mn or 'row_' in t or 'quad_perm' in t
        R = lambda i: set(regs_of(ops[i])) if i < len(ops) else set()
        allr = lambda a: set().union(*[R(i) for i in range(a, len(ops))]) if len(ops) > a else set()
        if mn.endswith(':') or mn.startswith('.'):
            self.cls = 'label'
        elif mn.startswith('v_mfma'):
            self.cls = 'mfma'
            self.wr = R(0)
            self.ab = R(1) | R(2)
            self.srcc = R(3)
            self.rd = self.ab | self.srcc
            self.passes = 8 if '32x32' in mn else 4
        elif mn.startswith('buffer_') or mn.startswith('global_'):
            self.cls = 'vm'
            lds = bool(re.search(r'\blds\b', t)) or '_lds_' in mn
            if lds:
                self.ldsdma = True
                self.rd = allr(0) | {('s', 'm0')}
            elif 'load' in mn:
                self.wr = R(0)
                self.rd = allr(1)
                if 'd16' in mn:
                    self.rd |= R(0)
            elif 'atomic' in mn:
                self.rd = allr(0)
                if re.search(r'\bsc0\b', t):
                    self.wr = R(0)
            else:
                self.rd = allr(0)
                if 'x3' in mn or 'x4' in mn:
                    self.wide_store = True
                    self.extra = R(0) if mn.startswith('buffer_') else R(1)
        elif mn.startswith('ds_'):
            self.cls = 'ds'
            if 'read' in mn or 'permute' in mn or 'swizzle' in mn:
                self.wr = R(0)
                self.rd = allr(1)
                if 'd16' in mn:
                    self.rd |= R(0)
            else:
                self.rd = allr(0)
        elif mn.startswith('s_load') or mn.startswith('s_memtime') or mn.startswith('s_memrealtime'):
            self.cls = 'smem'
            self.wr = R(0)
            self.rd = allr(1)
        elif mn.startswith('s_'):
            self.cls = 'salu'
            if mn.startswith(('s_cmp', 's_cbranch', 's_branch', 's_waitcnt', 's_nop', 's_barrier', 's_sleep', 's_endpgm',
                              's_setprio', 's_bitcmp')):
                self.rd = allr(0)
            else:
                self.wr = R(0)
                self.rd = allr(1)
                if mn.startswith(('s_addk', 's_mulk', 's_cmov', 's_bitset')):
                    self.rd |= R(0)
                if 'saveexec' in mn:
                    self.wr |= {('s', 'exec')}
        elif mn.startswith('v_'):
            self.cls = 'valu'
            self.wr = R(0)
            if mn.startswith(('v_add_co', 'v_sub_co', 'v_addc_co', 'v_subb_co')):
                self.wr |= R(1)
                self.rd = allr(2)
            else:
                self.rd = allr(1)
            if mn.startswith(('v_fmac', 'v_dot2c', 'v_pk_fmac', 'v_writelane')) or self.dpp:
                self.rd |= R(0)
            if mn.startswith('v_permlane') and 'swap' in mn:
                self.wr = R(0) | R(1)
                self.rd = R(0) | R(1)
            if mn.startswith('v_swap'):
                self.wr = R(0) | R(1)
                self.rd = R(0) | R(1)
        else:
            raise ValueError('unknown instr ' + text)


class Tok:
    pass


class Pseudo:
    def __init__(self, kind, arg=None):
        self.kind, self.arg = kind, arg


class Stream(list):
    def i(self, text):
        for line in text.split('\n'):
            line = line.strip()
            if line:
                self.append(Ins(line))
        return self

    def vm(self, text):
        t = Tok()
        self.append(Ins(text, tok=t))
        return t

    def waitvm(self, tok):
        self.append(Pseudo('waitvm', tok))

    def drain_vm(self):
        self.append(Pseudo('drainvm'))

    def drain_lgkm(self):
        self.append(Pseudo('drainlgkm'))

    def barrier(self):
        self.append(Pseudo('drainlgkm_w'))
        self.i('s_barrier')

    def cond_begin(self):
        self.append(Pseudo('cond_begin'))

    def cond_end(self):
        self.append(Pseudo('cond_end'))

    def comment(self, c):
        self.append(Pseudo('comment', c))

    def group(self, items):
        self.append(Pseudo('group', list(items)))


def weave(main, fill, start=0, end=None, per=None):
    idx = [n for n, x in enumerate(main) if isinstance(x, Ins) and x.cls == 'mfma']
    if end is None:
        end = len(idx)
    end = min(end, len(idx))
    slots = idx[start:end]
    out = Stream()
    nf = len(fill)
    if nf == 0:
        out.extend(main)
        return out
    pos = {}
    for f in range(nf):
        if per:
            s = min(f // per, len(slots) - 1)
        else:
            s = min(f * len(slots) // nf, len(slots) - 1)
        pos.setdefault(slots[s], []).append(fill[f])
    for n, x in enumerate(main):
        out.append(x)
        out.extend(pos.get(n, []))
    return out


def flatten(st):
    for x in st:
        if isinstance(x, Pseudo) and x.kind == 'group':
            yield from flatten(x.arg)
        else:
            yield x


def resolve_waits(st):
    out = []
    vm = []
    lg = []
    stack = []

    def emit_wait(vn=None, ln=None):
        parts = []
        if vn is not None:
            parts.append(f'vmcnt({min(vn, 63)})')
        if ln is not None:
            parts.append(f'lgkmcnt({min(ln, 15)})')
        out.append(Ins('s_waitcnt ' + ' '.join(parts)))

    for x in flatten(st):
        if isinstance(x, Pseudo):
            k = x.kind
            if k == 'comment':
                out.append(x)
            elif k == 'waitvm':
                pos = [n for n, e in enumerate(vm) if e['tok'] is x.arg]
                if pos:
                    n = len(vm) - 1 - pos[0]
                    emit_wait(vn=n)
                    del vm[:len(vm) - min(n, 63)]
            elif k == 'drainvm':
                emit_wait(vn=0)
                vm.clear()
            elif k == 'drainlgkm':
                emit_wait(ln=0)
                lg.clear()
            elif k == 'drainlgkm_w':
                if lg:
                    emit_wait(ln=0)
                    lg.clear()
            elif k == 'cond_begin':
                stack.append((list(vm), list(lg)))
                out.append(x)
            elif k == 'cond_end':
                ovm, olg = stack.pop()
                for e in vm:
                    assert e in ovm or not e['wr'], 'pending load left in conditional block'
                for e in lg:
                    assert e in olg, 'pending lgkm op left in conditional block'
                vm[:] = ovm
                lg[:] = olg
                out.append(x)
            continue
        touch = x.rd | x.wr
        vn = ln = None
        for n, e in enumerate(vm):
            if e['wr'] & touch:
                vn = len(vm) - 1 - n
        for n, e in enumerate(lg):
            if e['wr'] & touch:
                ln = len(lg) - 1 - n
        if ln is not None and any(e['smem'] for e in lg):
            ln = 0
        if vn is not None or ln is not None:
            emit_wait(vn, ln)
            if vn is not None:
                del vm[:len(vm) - min(vn, 63)]
            if ln is not None:
                del lg[:len(lg) - min(ln, 15)]
        if x.mn == 's_waitcnt':
            m = re.search(r'vmcnt\((\d+)\)', x.text)
            if m:
                n = int(m.group(1))
                del vm[:max(0, len(vm) - n)]
            m = re.search(r'lgkmcnt\((\d+)\)', x.text)
            if m:
                n = int(m.group(1))
                if n == 0 or not any(e['smem'] for e in lg):
                    del lg[:max(0, len(lg) - n)]
        out.append(x)
        if x.cls == 'vm':
            vm.append(dict(tok=x.tok, wr=set(x.wr)))
        elif x.cls == 'ds':
            lg.append(dict(wr=set(x.wr), smem=False))
        elif x.cls == 'smem':
            lg.append(dict(wr=set(x.wr), smem=True))
    return out


def need_ws(p, c):
    n = 0
    vw = {r for r in p.wr if r[0] in 'va'}
    sw = {r for r in p.wr if r[0] == 's'}
    if p.cls == 'valu':
        isdot = p.mn.startswith('v_dot')
        if c.cls == 'mfma' and vw & c.rd:
            n = max(n, 3 if isdot else 2)
        if c.cls == 'valu':
            if c.dpp and vw & c.rd:
                n = max(n, 2)
            if c.mn.startswith('v_permlane') and vw & c.rd:
                n = max(n, 2)
            if c.mn.startswith(('v_readlane', 'v_readfirstlane')) and vw & c.rd:
                n = max(n, 1)
            if p.mn.startswith(TRANS) and vw & c.rd:
                n = max(n, 1)
            if sw & c.rd:
                n = max(n, 4 if c.mn.startswith(('v_readlane', 'v_writelane')) else 2)
            if ('sdwa' in p.mn or 'op_sel' in p.text) and vw & (c.rd | c.wr):
                n = max(n, 1)
        if isdot and vw & (c.rd | c.wr):
            if c.mn == p.mn and c.mn.startswith('v_dot2c') and vw & c.wr and not (vw & (c.rd - c.wr)):
                pass
            else:
                n = max(n, 3)
        if c.cls == 'vm' and sw & c.rd:
            n = max(n, 5)
        if c.cls == 'salu' and sw & c.rd:
            n = max(n, 1)
    if p.cls == 'mfma':
        P = p.passes
        if c.cls == 'mfma':
            if vw & c.ab:
                n = max(n, P + 4)
            if vw & c.srcc:
                if not (c.srcc == vw and c.passes == P):
                    n = max(n, P + 2)
            if vw & c.wr and not (vw & c.srcc):
                n = max(n, P + 4)
        elif c.cls in ('valu', 'vm', 'ds'):
            if vw & (c.rd | c.wr):
                n = max(n, P + 4)
            if c.cls == 'valu' and p.srcc & c.wr:
                n = max(n, P - 1)
    if p.cls == 'salu' and ('s', 'm0') in p.wr and c.cls == 'vm' and c.ldsdma:
        n = max(n, 1)
    if p.cls == 'vm' and p.wide_store and p.extra & c.wr:
        n = max(n, 2)
    return n


def resolve_hazards(ins):
    out = []
    paths = [[]]
    saved = []
    nops = 0
    for x in ins:
        if isinstance(x, Pseudo):
            if x.kind == 'cond_begin':
                saved.append([list(h) for h in paths])
            elif x.kind == 'cond_end':
                paths = paths + saved.pop()
            else:
                out.append(x)
            continue
        if x.cls == 'label':
            out.append(x)
            continue
        need = 0
        for hist in paths:
            dist = 0
            for p, st in reversed(hist):
                r = need_ws(p, x)
                if r > dist:
                    need = max(need, r - dist)
                dist += st
                if dist >= 20:
                    break
        if need > 0:
            nop = Ins(f's_nop {need - 1}')
            out.append(nop)
            for hist in paths:
                hist.append((nop, need))
            nops += 1
        out.append(x)
        st = 1
        if x.mn == 's_nop':
            st = int(x.text.split()[1]) + 1
        for hist in paths:
            hist.append((x, st))
            if len(hist) > 24:
                del hist[:len(hist) - 24]
        uniq = []
        for hist in paths:
            if not any(len(u) == len(hist) and all(a[0] is b[0] for a, b in zip(u, hist)) for u in uniq):
                uniq.append(hist)
        paths = uniq
    return out, nops


def render(st):
    a = resolve_waits(st)
    a, nops = resolve_hazards(a)
    lines = []
    for x in a:
        if isinstance(x, Pseudo):
            lines.append('    ; ' + x.arg)
        elif x.cls == 'label':
            lines.append(x.text)
        else:
            lines.append('    ' + x.text)
    return '\n'.join(lines) + '\n', a
```

```python
import sys, struct
from asmdsl import *

KN = 'interleave_layers__spectral_fnet__dense_activation_relu__prompt_kernel'
PROF = '--prof' in sys.argv
SPIN = 1 << 17

WS_CT = 0
WS_CH = 16384
WS_W1F = 0x40000
WS_W2F = WS_W1F + 1605632
WS_T = WS_W2F + 1605632
T_SZ = 17 * 57344
WS_X2 = WS_T + 2 * T_SZ
WS_H = WS_X2 + 1835008
H_SZ = 7340032
WS_PROF = WS_H + 2 * H_SZ
WS_END = WS_PROF + 0x40000
XP = 928
XIMG = 0
TIMG = 0
X1IMG = 59392
REDA = 116736
REDB = 29696
ST_RSTD = 141312
ST_MR = ST_RSTD + 256
ST_MEAN = ST_RSTD + 512
ST_M1 = ST_RSTD + 768
ST_SSQ = ST_RSTD + 1024
LDS_SZ = ST_SSQ + 1024
sX, sWS, sOUT, sW, sDBG = 4, 8, 12, 16, 20
sQ, sJ, sWv, sA, sAM, sK, sXCD, sB = 24, 25, 26, 27, 28, 29, 30, 31
sT0, sT1, sT2, sT3, sT4, sT5 = 32, 33, 34, 35, 36, 37
sF = 38
sSPIN = 39
sM57 = 40
sMSP = 42
sMN0 = 44
sMC3 = 46
sROT = 48
sHB = 55
sW1B, sW2B = 56, 57
sSELE, sSELO = 58, 59
sONES = 60
sCH = 61
sPC = 62
sSTAMP = 64
vL, vL16, vN, vG = 0, 1, 2, 3
vXD, vXA, vSA, vRS = 4, 5, 6, 7
vFA, vSB, vTS, vTR = 8, 9, 10, 11
vB0, vB1 = 12, 13
vRW = 14
vO0, vO1 = 15, 16
vRA0, vRA1 = 17, 18
vSTA = 19
vONE, vPOLL = 20, 21
vT0, vT1 = 22, 23
BIG = 24
ACCA, ACCB = 136, 168
RING = 200
aG = 224


def v(a, n=1):
    return f'v{a}' if n == 1 else f'v[{a}:{a + n - 1}]'


def a_(a, n=1):
    return f'a{a}' if n == 1 else f'a[{a}:{a + n - 1}]'


def s(a, n=1):
    return f's{a}' if n == 1 else f's[{a}:{a + n - 1}]'


def fl(x):
    return '0x%08x' % struct.unpack('<I', struct.pack('<f', x))[0]


nlab = [0]


def lab(p):
    nlab[0] += 1
    return f'L_{p}_{nlab[0]}'


nstamp = [0]
stampnames = []


def stamp(k, name):
    if not PROF:
        return
    i = nstamp[0]
    nstamp[0] += 1
    stampnames.append(name)
    k.i(f's_memrealtime {s(sT4, 2)}')
    k.drain_lgkm()
    k.i(f's_mov_b32 {s(sSTAMP + i)}, {s(sT4)}')


def srd(k, d, lo, hi, size):
    k.i(f's_mov_b32 {s(d)}, {s(lo)}\ns_and_b32 {s(d + 1)}, {s(hi)}, 0xffff\ns_mov_b32 {s(d + 2)}, {size}\ns_mov_b32 {s(d + 3)}, 0x20000')


def spin_loop(k, load, target, first_done):
    ok, lp = lab('ok'), lab('sp')
    if first_done:
        k.i(f'v_cmp_ne_u32 vcc, {target}, {v(vPOLL)}')
        k.i(f's_cbranch_vccz {ok}')
    k.cond_begin()
    k.i(f's_mov_b32 {s(sSPIN)}, {SPIN}')
    k.i(f'{lp}:')
    k.i(load)
    k.i('s_waitcnt vmcnt(0)')
    k.i(f'v_cmp_ne_u32 vcc, {target}, {v(vPOLL)}')
    k.i(f's_sub_u32 {s(sSPIN)}, {s(sSPIN)}, 1')
    k.i(f's_cbranch_scc1 {ok}')
    k.i(f's_cbranch_vccnz {lp}')
    k.cond_end()
    k.i(f'{ok}:')


def setup(k):
    k.i(f's_cmp_ge_u32 s2, 224\ns_cbranch_scc1 L_end')
    k.i(f's_load_dwordx2 {s(32, 2)}, s[0:1], 0')
    k.i(f's_load_dwordx4 {s(64, 4)}, s[0:1], 48')
    k.i(f's_load_dwordx4 {s(68, 4)}, s[0:1], 64')
    k.i(f's_load_dwordx2 {s(72, 2)}, s[0:1], 80')
    k.i(f's_getpc_b64 {s(sPC, 2)}')
    k.i(f'v_lshlrev_b32 {v(vT0)}, 7, v0')
    k.i(f'v_min_u32 {v(vT1)}, CODE_LAST_LINE, {v(vT0)}')
    k.i(f'global_load_dword {v(RING + 54)}, {v(vT1)}, {s(sPC, 2)}')
    k.i(f'v_add_u32 {v(vT0)}, 0x8000, {v(vT0)}')
    k.i(f'v_min_u32 {v(vT0)}, CODE_LAST_LINE, {v(vT0)}')
    k.i(f'global_load_dword {v(RING + 55)}, {v(vT0)}, {s(sPC, 2)}')
    k.i(f'v_lshrrev_b32 {v(vT1)}, 6, v0')
    k.i(f'v_and_b32 {v(vL)}, 63, v0')
    k.i(f'v_readfirstlane_b32 {s(sWv)}, {v(vT1)}')
    k.i(f'''s_and_b32 {s(sXCD)}, s2, 7
    s_lshr_b32 {s(sT2)}, s2, 3
    s_mul_i32 {s(sT3)}, {s(sT2)}, 37
    s_lshr_b32 {s(sT3)}, {s(sT3)}, 8
    s_lshl_b32 {s(sQ)}, {s(sXCD)}, 2
    s_add_u32 {s(sQ)}, {s(sQ)}, {s(sT3)}
    s_mul_i32 {s(sT3)}, {s(sT3)}, 7
    s_sub_u32 {s(sJ)}, {s(sT2)}, {s(sT3)}
    s_lshr_b32 {s(sA)}, {s(sQ)}, 1
    s_and_b32 {s(sT2)}, {s(sQ)}, 1
    s_lshl_b32 {s(sT2)}, {s(sT2)}, 5
    s_add_u32 {s(sA)}, {s(sA)}, {s(sT2)}
    s_cmp_eq_u32 {s(sQ)}, 1
    s_cselect_b32 {s(sA)}, 16, {s(sA)}
    s_cmp_eq_u32 {s(sQ)}, 0
    s_cselect_b32 {s(sAM)}, 32, {s(sA)}
    s_cselect_b32 {s(sF)}, 0, 1.0
    s_and_b32 {s(sK)}, {s(sA)}, 31
    s_lshl_b32 {s(sB)}, {s(sJ)}, 2
    s_add_u32 {s(sB)}, {s(sB)}, {s(sWv)}
    s_mov_b32 {s(sM57)}, -1
    s_mov_b32 {s(sM57 + 1)}, 0x01ffffff''')
    k.i(f'''v_lshlrev_b32 {v(vL16)}, 4, {v(vL)}
    v_and_b32 {v(vN)}, 15, {v(vL)}
    v_lshrrev_b32 {v(vG)}, 4, {v(vL)}
    v_mov_b32 {v(vT0)}, 448
    v_cmp_eq_u32 vcc, 56, {v(vL)}
    v_cndmask_b32 {v(vXD)}, {v(vL16)}, {v(vT0)}, vcc''')
    k.drain_lgkm()
    srd(k, sX, 32, 33, 1835008)
    srd(k, sWS, 72, 73, WS_END)
    k.i(f's_cmp_lt_u32 {s(sQ)}, 14')
    k.i(f's_cselect_b32 {s(64)}, {s(64)}, {s(66)}\ns_cselect_b32 {s(65)}, {s(65)}, {s(67)}')
    srd(k, sW, 64, 65, 1605632)
    srd(k, sOUT, 68, 69, 1835008)
    srd(k, sDBG, 70, 71, 256)


def consts(k):
    k.i(f'''s_mov_b32 {s(sONES)}, 0x3f803f80
    s_mov_b32 {s(sMN0)}, 0x00010001
    s_mov_b32 {s(sMN0 + 1)}, 0x00010001
    s_mov_b32 {s(sMC3)}, 0x00070007
    s_mov_b32 {s(sMC3 + 1)}, 0x00070007
    s_cmp_eq_u32 {s(sB)}, 0
    s_cselect_b32 {s(sMSP)}, 0xfefefefe, -1
    s_mov_b32 {s(sMSP + 1)}, {s(sMSP)}
    s_lshl_b32 {s(sCH)}, {s(sQ)}, 12
    s_add_u32 {s(sCH)}, {s(sCH)}, {WS_CH}
    s_mul_i32 {s(sW1B)}, {s(sB)}, 57344
    s_add_u32 {s(sW2B)}, {s(sW1B)}, {WS_W2F}
    s_add_u32 {s(sW1B)}, {s(sW1B)}, {WS_W1F}''')
    for i in range(7):
        k.i(f'''s_add_u32 {s(sT2)}, {s(sJ)}, {i}
        s_cmp_ge_u32 {s(sT2)}, 7
        s_cselect_b32 {s(sT3)}, 7, 0
        s_sub_u32 {s(sT2)}, {s(sT2)}, {s(sT3)}
        s_lshl_b32 {s(sROT + i)}, {s(sT2)}, 12''')
    k.i(f'''s_lshl_b32 {s(sT2)}, {s(sQ)}, 3
    s_add_u32 {s(sT2)}, {s(sT2)}, {s(sWv)}
    s_mul_i32 {s(sHB)}, {s(sT2)}, 28672
    s_add_u32 {s(sHB)}, {s(sHB)}, {WS_H}''')
    k.i(f'v_mov_b32 {v(vONE)}, 1')
    k.i(f'''v_mul_u32_u24 {v(vXA)}, {XP}, {v(vN)}
    v_lshl_add_u32 {v(vXA)}, {v(vG)}, 4, {v(vXA)}
    s_lshl_b32 {s(sT2)}, {s(sWv)}, 2
    v_add_u32 {v(vT0)}, {s(sT2)}, {v(vG)}
    v_mul_u32_u24 {v(vSA)}, {XP}, {v(vT0)}
    v_lshl_add_u32 {v(vSA)}, {v(vN)}, 3, {v(vSA)}''')
    k.i(f'''s_lshl_b32 {s(sT2)}, {s(sB)}, 11
    s_lshl_b32 {s(sT3)}, {s(sQ)}, 6
    s_add_u32 {s(sT2)}, {s(sT2)}, {s(sT3)}
    v_mul_u32_u24 {v(vTS)}, 57344, {v(vN)}
    v_lshl_add_u32 {v(vTS)}, {v(vG)}, 4, {v(vTS)}
    v_add_u32 {v(vTS)}, {s(sT2)}, {v(vTS)}''')
    k.i(f'''v_and_b32 {v(vT0)}, 3, {v(vL)}
    v_lshlrev_b32 {v(vTR)}, 4, {v(vT0)}
    v_lshl_add_u32 {v(vTR)}, {v(vG)}, 7, {v(vTR)}
    v_bfe_u32 {v(vT0)}, {v(vL)}, 3, 1
    v_lshl_add_u32 {v(vTR)}, {v(vT0)}, 6, {v(vTR)}
    v_bfe_u32 {v(vT0)}, {v(vL)}, 2, 1
    v_lshl_add_u32 {v(vTR)}, {v(vT0)}, 3, {v(vTR)}
    s_mul_i32 {s(sT2)}, {s(sWv)}, 14336
    v_add_u32 {v(vTR)}, {s(sT2)}, {v(vTR)}''')
    k.i(f'''s_lshr_b32 {s(sT2)}, {s(sWv)}, 1
    s_lshl_b32 {s(sT3)}, {s(sT2)}, 10
    s_add_u32 {s(sT4)}, {s(sT3)}, {X1IMG}
    v_add_u32 {v(vB0)}, {s(sT4)}, {v(vL16)}
    s_xor_b32 {s(sT3)}, {s(sT3)}, 1024
    s_add_u32 {s(sT4)}, {s(sT3)}, {X1IMG}
    v_add_u32 {v(vB1)}, {s(sT4)}, {v(vL16)}''')
    k.i(f'''s_lshl_b32 {s(sT3)}, {s(sWv)}, 11
    v_add_u32 {v(vRW)}, {s(sT3)}, {v(vL16)}''')
    k.i(f'''s_lshl_b32 {s(sT3)}, {s(sT2)}, 4
    v_add_u32 {v(vT0)}, {s(sT3)}, {v(vN)}
    v_lshlrev_b32 {v(vSTA)}, 2, {v(vT0)}
    v_mul_u32_u24 {v(vT0)}, 57344, {v(vT0)}
    s_and_b32 {s(sT3)}, {s(sWv)}, 1
    s_lshl_b32 {s(sT3)}, {s(sT3)}, 5
    s_lshl_b32 {s(sT4)}, {s(sJ)}, 6
    s_add_u32 {s(sT3)}, {s(sT3)}, {s(sT4)}
    s_lshl_b32 {s(sT4)}, {s(sT3)}, 1
    v_lshl_add_u32 {v(vT1)}, {v(vG)}, 4, {s(sT4)}
    s_mul_i32 {s(sT4)}, {s(sA)}, 896
    v_add3_u32 {v(vO0)}, {v(vT0)}, {v(vT1)}, {s(sT4)}
    s_sub_u32 {s(sT4)}, 2048, {s(sAM)}
    s_mul_i32 {s(sT4)}, {s(sT4)}, 896
    v_add_u32 {v(vT1)}, {s(sT4)}, {v(vT1)}
    v_sub_u32 {v(vO1)}, {v(vT1)}, {v(vT0)}''')
    k.i(f'''s_lshr_b32 {s(sT4)}, {s(sT3)}, 3
    v_add_u32 {v(vT0)}, {s(sT4)}, {v(vG)}
    v_sub_u32 {v(vT1)}, 55, {v(vT0)}
    s_cmp_lt_u32 {s(sT3)}, 224
    s_cselect_b64 vcc, -1, 0
    s_cselect_b32 {s(sSELE)}, 0x01000c0c, {s(sONES)}
    s_cselect_b32 {s(sT5)}, 0, 512''')
    k.i(f'''s_cmp_lt_u32 {s(sT3)}, 224
    s_mov_b32 {s(sT4)}, 0x05040c0c
    s_cselect_b32 {s(sSELE)}, {s(sSELE)}, {s(sT4)}
    s_add_u32 {s(sSELO)}, {s(sSELE)}, 0x02020000
    v_cndmask_b32 {v(vT0)}, {v(vT1)}, {v(vT0)}, vcc
    v_add_u32 {v(vT1)}, 1, {v(vT1)}
    v_cmp_le_u32 vcc, 28, {v(vT1)}
    v_cndmask_b32 {v(vT1)}, {v(vT1)}, 0, vcc''')
    k.i(f'''s_lshl_b32 {s(sT4)}, {s(sT2)}, 10
    s_add_u32 {s(sT4)}, {s(sT4)}, {X1IMG}
    s_add_u32 {s(sT4)}, {s(sT4)}, {s(sT5)}''')
    for src, dst in ((vT0, vRA0), (vT1, vRA1)):
        k.i(f'''v_lshrrev_b32 {v(dst)}, 1, {v(src)}
        v_lshlrev_b32 {v(dst)}, 12, {v(dst)}
        v_and_b32 {v(src)}, 1, {v(src)}
        v_lshl_add_u32 {v(dst)}, {v(src)}, 3, {v(dst)}
        v_lshl_add_u32 {v(dst)}, {v(vN)}, 4, {v(dst)}
        v_add_u32 {v(dst)}, {s(sT4)}, {v(dst)}''')


def zero_flags(k):
    z = RING
    k.i(f'v_mov_b32 {v(z)}, 0\nv_mov_b32 {v(z + 1)}, 0\nv_mov_b32 {v(z + 2)}, 0\nv_mov_b32 {v(z + 3)}, 0')
    k.i(f'''s_lshl_b32 {s(sT2)}, {s(sWv)}, 12
    s_cmp_eq_u32 s2, 223
    s_cselect_b32 {s(sT2)}, {s(sT2)}, 0x40000000
    v_add_u32 {v(z + 4)}, {s(sT2)}, {v(vL16)}''')
    for i in range(4):
        t = k.vm(f'buffer_store_dwordx4 {v(z, 4)}, {v(z + 4)}, {s(sWS, 4)}, 0 offen offset:{i * 1024} sc1')
    k.i(f'''s_lshl_b32 {s(sT2)}, {s(sQ)}, 2
    s_add_u32 {s(sT2)}, {s(sT2)}, {s(sWv)}
    s_lshl_b32 {s(sT2)}, {s(sT2)}, 10
    s_add_u32 {s(sT2)}, {s(sT2)}, {WS_CH}
    s_cmp_eq_u32 {s(sJ)}, 0
    s_cselect_b32 {s(sT2)}, {s(sT2)}, 0x40000000
    v_add_u32 {v(z + 5)}, {s(sT2)}, {v(vL16)}''')
    k.vm(f'buffer_store_dwordx4 {v(z, 4)}, {v(z + 5)}, {s(sWS, 4)}, 0 offen sc1')
    return t


def set_ready(k, tok):
    k.waitvm(tok)
    k.i(f'''s_lshl_b32 {s(sT2)}, {s(sWv)}, 2
    s_cmp_eq_u32 s2, 223
    s_cselect_b32 {s(sT2)}, {s(sT2)}, 0x40000000
    v_lshlrev_b32 {v(vT0)}, 8, {v(vL)}
    v_add_u32 {v(vT0)}, {s(sT2)}, {v(vT0)}''')
    k.vm(f'buffer_store_dword {v(vONE)}, {v(vT0)}, {s(sDBG, 4)}, 0 offen sc1')


def x_dma(k, layer):
    toks = []
    srdn, base = (sX, 0) if layer == 0 else (sWS, WS_X2)
    k.i(f's_mov_b64 exec, {s(sM57, 2)}')
    k.i(f'''s_lshl_b32 {s(sT2)}, {s(sWv)}, 8
    s_add_u32 {s(sT0)}, {s(sT2)}, {s(sA)}
    s_mul_i32 {s(sT0)}, {s(sT0)}, 896
    s_add_u32 {s(sT1)}, {s(sT2)}, {s(sAM)}
    s_sub_u32 {s(sT1)}, 2048, {s(sT1)}
    s_mul_i32 {s(sT1)}, {s(sT1)}, 896
    s_mul_i32 {s(sT3)}, {s(sWv)}, {4 * XP}''')
    if base:
        k.i(f's_add_u32 {s(sT0)}, {s(sT0)}, {base}\ns_add_u32 {s(sT1)}, {s(sT1)}, {base}')
    for rt in range(4):
        for i in range(4):
            off = ((rt & 1) * 16 + i) * 57344
            if rt < 2:
                k.i(f's_add_u32 {s(sT2)}, {s(sT0)}, {off}')
            else:
                k.i(f's_sub_u32 {s(sT2)}, {s(sT1)}, {off}')
            k.i(f's_add_u32 m0, {s(sT3)}, {XIMG + (rt * 16 + i) * XP}')
            t = k.vm(f'buffer_load_dwordx4 {v(vXD)}, {s(srdn, 4)}, {s(sT2)} offen sc1 lds')
        toks.append(t)
    k.i('s_mov_b64 exec, -1')
    return toks


CV = ACCA


def conv_issue(k):
    vo, la, so = CV, CV + 4, CV + 8
    t0, t1, t2 = CV + 9, CV + 10, CV + 11
    w2, dn = lab('cw2'), lab('cdn')
    k.i(f'''v_lshrrev_b32 {v(t0)}, 5, {v(vL)}
    v_bfe_u32 {v(t1)}, {v(vL)}, 3, 2
    v_and_b32 {v(t2)}, 7, {v(vL)}
    v_lshlrev_b32 {v(t2)}, 4, {v(t2)}''')
    k.i(f'''v_bfe_u32 {v(vT0)}, {v(vL)}, 2, 2
    v_lshlrev_b32 {v(vT0)}, 7, {v(vT0)}
    v_lshl_add_u32 {v(vT0)}, {v(vG)}, 10, {v(vT0)}
    s_lshl_b32 {s(sT5)}, {s(sWv)}, 12
    s_add_u32 {s(sT5)}, {s(sT5)}, {X1IMG}
    v_add_u32 {v(vT0)}, {s(sT5)}, {v(vT0)}
    v_and_b32 {v(vT1)}, 3, {v(vL)}''')
    k.i(f's_cmp_ge_u32 {s(sQ)}, 14\ns_cbranch_scc1 {w2}')
    k.cond_begin()
    k.i(f'''s_lshl_b32 {s(sT2)}, {s(sQ)}, 4
    v_lshl_add_u32 {v(t0)}, {v(t0)}, 3, {v(t1)}
    v_add_u32 {v(t0)}, {s(sT2)}, {v(t0)}
    s_lshl_b32 {s(sT2)}, {s(sB)}, 7
    v_add_u32 {v(t2)}, {s(sT2)}, {v(t2)}
    s_mov_b32 {s(sT3)}, 3584
    v_mad_u32_u24 {v(vo)}, {v(t0)}, {s(sT3)}, {v(t2)}
    v_add_u32 {v(vo + 1)}, {4 * 3584}, {v(vo)}
    v_sub_u32 {v(t1)}, 448, {v(t0)}
    v_mad_u32_u24 {v(vo + 3)}, {v(t1)}, {s(sT3)}, {v(t2)}
    v_subrev_u32 {v(vo + 3)}, {4 * 3584}, {v(vo + 3)}
    v_cmp_eq_u32 vcc, 0, {v(t0)}
    v_mov_b32 {v(t0)}, 224
    v_cndmask_b32 {v(t1)}, {v(t1)}, {v(t0)}, vcc
    v_mad_u32_u24 {v(vo + 2)}, {v(t1)}, {s(sT3)}, {v(t2)}
    v_lshl_add_u32 {v(la)}, {v(vT1)}, 3, {v(vT0)}
    v_add_u32 {v(la + 1)}, 32, {v(la)}
    v_add_u32 {v(la + 2)}, 64, {v(la)}
    v_add_u32 {v(la + 3)}, 96, {v(la)}
    s_mul_i32 {s(sT2)}, {s(sB)}, 14
    s_add_u32 {s(sT2)}, {s(sT2)}, {s(sQ)}
    s_lshl_b32 {s(sT2)}, {s(sT2)}, 12
    s_add_u32 {s(sT2)}, {s(sT2)}, {WS_W1F}
    s_branch {dn}''')
    k.cond_end()
    k.i(f'{w2}:')
    k.cond_begin()
    k.i(f'''s_sub_u32 {s(sT4)}, {s(sQ)}, 14
    s_lshr_b32 {s(sT2)}, {s(sT4)}, 1
    s_lshl_b32 {s(sT2)}, {s(sT2)}, 8
    s_and_b32 {s(sT3)}, {s(sT4)}, 1
    s_lshl_b32 {s(sT3)}, {s(sT3)}, 5
    s_add_u32 {s(sT2)}, {s(sT2)}, {s(sT3)}
    s_lshl_b32 {s(sT3)}, {s(sWv)}, 6
    s_add_u32 {s(sT2)}, {s(sT2)}, {s(sT3)}
    v_lshl_add_u32 {v(t0)}, {v(t0)}, 4, {v(t1)}
    v_add_u32 {v(t0)}, {s(sT2)}, {v(t0)}
    s_lshl_b32 {s(sT2)}, {s(sJ)}, 7
    v_add_u32 {v(t2)}, {s(sT2)}, {v(t2)}
    s_mov_b32 {s(sT3)}, 896
    v_mad_u32_u24 {v(vo)}, {v(t0)}, {s(sT3)}, {v(t2)}
    v_add_u32 {v(vo + 1)}, {4 * 896}, {v(vo)}
    v_add_u32 {v(vo + 2)}, {8 * 896}, {v(vo)}
    v_add_u32 {v(vo + 3)}, {12 * 896}, {v(vo)}
    v_lshl_add_u32 {v(la)}, {v(vT1)}, 4, {v(vT0)}
    s_and_b32 {s(sT3)}, {s(sWv)}, 1
    s_lshl_b32 {s(sT3)}, {s(sT3)}, 6
    v_add_u32 {v(la)}, {s(sT3)}, {v(la)}
    v_add_u32 {v(la + 1)}, 8, {v(la)}
    v_xor_b32 {v(la + 2)}, 64, {v(la)}
    v_add_u32 {v(la + 3)}, 8, {v(la + 2)}
    s_mul_i32 {s(sT2)}, {s(sB)}, 14
    s_add_u32 {s(sT2)}, {s(sT2)}, {s(sT4)}
    s_lshl_b32 {s(sT2)}, {s(sT2)}, 12
    s_add_u32 {s(sT2)}, {s(sT2)}, {WS_W2F}
    s_cmp_ge_u32 {s(sQ)}, 28
    s_cselect_b32 {s(sT2)}, 0x40000000, {s(sT2)}''')
    k.cond_end()
    k.i(f'{dn}:')
    k.i(f'v_add_u32 {v(so)}, {s(sT2)}, {v(vL16)}')
    for i in range(4):
        k.i(f's_add_u32 m0, {s(sT5)}, {i * 1024}')
        t = k.vm(f'buffer_load_dwordx4 {v(vo + i)}, {s(sW, 4)}, 0 offen lds')
    return t


def conv_finish(k, tok):
    la, so, d = CV + 4, CV + 8, CV + 12
    k.waitvm(tok)
    for nt in range(4):
        for hh in range(2):
            k.i(f'ds_read_b64_tr_b16 {v(d + 4 * nt + 2 * hh, 2)}, {v(la + nt)} offset:{hh * 512}')
    for nt in range(4):
        k.vm(f'buffer_store_dwordx4 {v(d + 4 * nt, 4)}, {v(so)}, {s(sWS, 4)}, 0 offen offset:{nt * 1024} sc1')


RD = BIG
MM = BIG + 56
ZA = BIG + 76
OPS = BIG + 92
OPC = BIG + 100


def gen_RD(k, first):
    c0, c1 = RING, RING + 8
    ef, ph, K, df = RING + 16, RING + 17, RING + 18, RING + 19
    k.i(f'''s_lshl_b32 {s(sT2)}, {s(sB)}, 3
    v_and_b32 {v(ef)}, 7, {v(vN)}
    v_add_u32 {v(ef)}, {s(sT2)}, {v(ef)}
    v_cmp_le_u32 vcc, 8, {v(vN)}
    v_cmp_eq_u32 {s(sT4, 2)}, 0, {v(ef)}
    s_and_b64 {s(sT4, 2)}, {s(sT4, 2)}, vcc
    s_andn2_b64 vcc, vcc, {s(sT4, 2)}
    v_mov_b32 {v(K)}, 224
    v_cndmask_b32 {v(ef)}, {v(ef)}, {v(K)}, {s(sT4, 2)}
    v_mov_b32 {v(K)}, {fl(-0.25)}
    v_cndmask_b32 {v(ph)}, 0, {v(K)}, vcc''')
    if first:
        k.i(f'''v_cndmask_b32 {v(vSB)}, 1.0, -1.0, vcc
        v_mul_f32 {v(vFA)}, {s(sF)}, {v(vSB)}''')
    k.i(f'''v_cvt_f32_u32 {v(ef)}, {v(ef)}
    v_mul_f32 {v(ef)}, {fl(1.0 / 448)}, {v(ef)}
    v_lshlrev_b32 {v(df)}, 3, {v(vG)}
    v_cvt_f32_u32 {v(df)}, {v(df)}
    v_fma_f32 {v(ph)}, {v(df)}, {v(ef)}, {v(ph)}
    v_mul_f32 {v(K)}, {fl(32.0)}, {v(ef)}
    v_add_f32 {v(df)}, {v(ph)}, {v(K)}
    v_cos_f32 {v(K)}, {v(K)}''')
    for jj in range(8):
        k.i(f'v_mov_b32 {v(vT0)}, {fl(float(jj))}')
        k.i(f'v_fma_f32 {v(c0 + jj)}, {v(vT0)}, {v(ef)}, {v(ph)}')
        k.i(f'v_fma_f32 {v(c1 + jj)}, {v(vT0)}, {v(ef)}, {v(df)}')
    k.i(f'v_add_f32 {v(K)}, {v(K)}, {v(K)}')
    for jj in range(16):
        k.i(f'v_cos_f32 {v(c0 + jj)}, {v(c0 + jj)}')
    for ks in range(14):
        c = c0 if ks % 2 == 0 else c1
        o = c1 if ks % 2 == 0 else c0
        if ks >= 2:
            for jj in range(8):
                k.i(f'v_fma_f32 {v(c + jj)}, {v(K)}, {v(o + jj)}, -{v(c + jj)}')
        for p in range(4):
            k.i(f'v_cvt_pk_bf16_f32 {v(RD + 4 * ks + p)}, {v(c + 2 * p)}, {v(c + 2 * p + 1)}')
    k.i(f'''v_and_b32 {v(vT0)}, 0xffff0000, {v(RD)}
    v_cmp_eq_u32 vcc, 0, {v(vG)}
    v_cndmask_b32 {v(RD)}, {v(RD)}, {v(vT0)}, vcc''')
    if first:
        k.i(f'v_mov_b32 {v(vRS)}, 0\nv_mov_b32 {v(vT0)}, 0')
        for r in range(0, 56, 2):
            k.i(f'v_dot2c_f32_bf16 {v(vRS)}, {s(sONES)}, {v(RD + r)}')
            k.i(f'v_dot2c_f32_bf16 {v(vT0)}, {s(sONES)}, {v(RD + r + 1)}')
        k.i(f'''v_add_f32 {v(vRS)}, {v(vRS)}, {v(vT0)}
        v_mov_b32 {v(vT0)}, {v(vRS)}
        v_permlane32_swap_b32 {v(vRS)}, {v(vT0)}
        v_add_f32 {v(vRS)}, {v(vRS)}, {v(vT0)}
        v_mov_b32 {v(vT0)}, {v(vRS)}
        v_permlane16_swap_b32 {v(vRS)}, {v(vT0)}
        v_add_f32 {v(vRS)}, {v(vRS)}, {v(vT0)}''')


def gen_M(k):
    nf, j0, dl = RING + 20, RING + 21, RING + 22
    t = RING + 24
    k.i(f'''v_cvt_f32_u32 {v(nf)}, {v(vN)}
    v_mul_f32 {v(nf)}, {fl(1.0 / 32)}, {v(nf)}
    v_lshlrev_b32 {v(j0)}, 2, {v(vG)}
    v_cvt_f32_u32 {v(j0)}, {v(j0)}
    v_mul_f32 {v(j0)}, {v(j0)}, {v(nf)}
    v_mul_f32 {v(dl)}, 0.5, {v(nf)}
    v_mov_b32 {v(vT0)}, {fl(-0.25)}
    s_cmp_eq_u32 {s(sQ)}, 0
    s_cselect_b64 vcc, -1, 0
    v_cndmask_b32 {v(dl)}, {v(vT0)}, {v(dl)}, vcc''')
    for jj in range(8):
        jo = jj if jj < 4 else 12 + jj
        k.i(f'v_mov_b32 {v(vT0)}, {fl(float(jo))}')
        k.i(f'v_fma_f32 {v(t + jj)}, {v(vT0)}, {v(nf)}, {v(j0)}')
        k.i(f'v_add_f32 {v(t + 16 + jj)}, {v(t + jj)}, {v(dl)}')
    for base in (0, 16):
        for jj in range(8):
            k.i(f'v_sin_f32 {v(t + base + 8 + jj)}, -{v(t + base + jj)}')
            k.i(f'v_cos_f32 {v(t + base + jj)}, {v(t + base + jj)}')
    for p in range(16):
        k.i(f'v_cvt_pk_f16_f32 {v(MM + p)}, {v(t + 2 * p)}, {v(t + 2 * p + 1)}')
    for p in range(4):
        k.i(f'v_mov_b32 {v(MM + 16 + p)}, 0xbc003c00')
    for p in range(8):
        k.i(f'v_mov_b32 {v(OPS + p)}, 0')


def gen_G(k):
    af = RING
    tf = RING + 8
    t = RING + 12
    for ks2 in range(2):
        for rho in range(4):
            c = 8 * ks2 + 4 * (rho >> 1) + 32 * (rho & 1)
            k.i(f'v_add_u32 {v(af + 4 * ks2 + rho)}, {c}, {v(vG)}')
    k.i(f'''v_cmp_eq_u32 vcc, 0, {v(vG)}
    v_cndmask_b32 {v(af + 1)}, {v(af + 1)}, 16, vcc''')
    for i in range(8):
        k.i(f'v_cvt_f32_u32 {v(af + i)}, {v(af + i)}')
        k.i(f'v_mul_f32 {v(af + i)}, {fl(1.0 / 2048)}, {v(af + i)}')
    for rt in range(4):
        k.i(f's_add_u32 {s(sT2)}, {s(sA if rt < 2 else sAM)}, {1024 * (rt & 1)}')
        k.i(f'v_lshl_add_u32 {v(tf + rt)}, {v(vN)}, 6, {s(sT2)}')
        k.i(f'v_cvt_f32_u32 {v(tf + rt)}, {v(tf + rt)}')
    for m, src in ((0, sA), (1, sAM)):
        k.i(f'''s_cmp_lt_u32 {s(src)}, 16
        s_mov_b32 {s(sT2 + m)}, 0xbc003c00
        s_cselect_b32 {s(sT2 + m)}, 0x3c003c00, {s(sT2 + m)}''')
    k.i(f'v_mov_b32 {v(vT0)}, {s(sT2)}\nv_mov_b32 {v(vT1)}, {s(sT3)}')
    for rt in range(4):
        for i in range(8):
            k.i(f'v_mul_f32 {v(t + 2 * i)}, {v(tf + rt)}, {v(af + i)}')
        for i in range(8):
            k.i(f'v_sin_f32 {v(t + 2 * i + 1)}, -{v(t + 2 * i)}')
            k.i(f'v_cos_f32 {v(t + 2 * i)}, {v(t + 2 * i)}')
        for i in range(8):
            k.i(f'v_cvt_pk_f16_f32 {v(t + 16 + i)}, {v(t + 2 * i)}, {v(t + 2 * i + 1)}')
        k.i(f'v_cndmask_b32 {v(t + 16)}, {v(t + 16)}, {v(vT0 if rt < 2 else vT1)}, vcc')
        for i in range(8):
            k.i(f'v_accvgpr_write_b32 {a_(aG + 8 * rt + i)}, {v(t + 16 + i)}')


def phase_a(k, layer, xt):
    AF = ACCA
    SD = RING
    S1, S2 = RING + 14, RING + 15
    sw = RING + 16
    k.i(f'''s_lshl_b32 {s(sT2)}, {s(sWv)}, 4
    s_add_u32 {s(sT2)}, {s(sT2)}, {ST_RSTD}
    v_lshlrev_b32 {v(sw)}, 8, {v(vN)}
    v_lshl_add_u32 {v(sw)}, {v(vG)}, 2, {v(sw)}
    v_add_u32 {v(sw)}, {s(sT2)}, {v(sw)}
    v_cmp_eq_u32 {s(sT0, 2)}, 1, {v(vN)}
    v_cmp_eq_u32 {s(sT2, 2)}, 2, {v(vN)}''')
    nf = 0
    for rt in range(4):
        k.waitvm(xt[rt])
        k.barrier()
        st = Stream()
        for i in range(7):
            st.i(f'ds_read_b64 {v(SD + 2 * i, 2)}, {v(vSA)} offset:{rt * 16 * XP + i * 128}')
        st.i(f'v_mov_b32 {v(S1)}, 0\nv_mov_b32 {v(S2)}, 0')
        g = Stream()
        pre = 4
        for ks in range(14 + pre):
            if ks < 14:
                g.i(f'ds_read_b128 {v(AF + 4 * ((nf + ks) % 8), 4)}, {v(vXA)} offset:{rt * 16 * XP + ks * 64}')
            if ks >= pre:
                q = ks - pre
                c = '0' if q == 0 else v(ZA + 4 * rt, 4)
                g.i(f'v_mfma_f32_16x16x32_bf16 {v(ZA + 4 * rt, 4)}, {v(AF + 4 * ((nf + q) % 8), 4)}, {v(RD + 4 * q, 4)}, {c}')
        nf += 14
        f = Stream()
        for i in range(14):
            f.i(f'v_dot2c_f32_bf16 {v(S1)}, {s(sONES)}, {v(SD + i)}')
            f.i(f'v_dot2c_f32_bf16 {v(S2)}, {v(SD + i)}, {v(SD + i)}')
        for sh in (8, 4, 2, 1):
            f.i(f'v_add_f32_dpp {v(S1)}, {v(S1)}, {v(S1)} row_ror:{sh} row_mask:0xf bank_mask:0xf')
            f.i(f'v_add_f32_dpp {v(S2)}, {v(S2)}, {v(S2)} row_ror:{sh} row_mask:0xf bank_mask:0xf')
        f.i(f'''v_mul_f32 {v(S1)}, {fl(1.0 / 448)}, {v(S1)}
        v_mul_f32 {v(S2)}, {fl(1.0 / 448)}, {v(S2)}
        v_fma_f32 {v(S2)}, -{v(S1)}, {v(S1)}, {v(S2)}
        v_max_f32 {v(S2)}, 0, {v(S2)}
        v_add_f32 {v(S2)}, {fl(1e-5)}, {v(S2)}
        v_rsq_f32 {v(S2)}, {v(S2)}
        v_mul_f32 {v(vT0)}, {v(S1)}, {v(S2)}
        v_cndmask_b32 {v(S2)}, {v(S2)}, {v(vT0)}, {s(sT0, 2)}
        v_cndmask_b32 {v(S2)}, {v(S2)}, {v(S1)}, {s(sT2, 2)}''')
        k.extend(st)
        k.extend(weave(g, f))
        k.i(f's_mov_b64 exec, {s(sMC3, 2)}')
        k.i(f'ds_write_b32 {v(sw)}, {v(S2)} offset:{rt * 64}')
        k.i('s_mov_b64 exec, -1')
    k.barrier()
    stamp(k, f'L{layer} gemmA done')
    RS, MR = ACCA, ACCA + 16
    k.i(f'v_lshlrev_b32 {v(vT0)}, 4, {v(vG)}\nv_add_u32 {v(vT0)}, {ST_RSTD}, {v(vT0)}')
    for rt in (0, 2, 1, 3):
        k.i(f'ds_read_b128 {v(RS + 4 * rt, 4)}, {v(vT0)} offset:{rt * 64}')
        k.i(f'ds_read_b128 {v(MR + 4 * rt, 4)}, {v(vT0)} offset:{256 + rt * 64}')
    OA, OB = ACCB, ACCB + 8
    for h in range(2):
        for rt in (h, h + 2):
            for r in range(4):
                i = 4 * rt + r
                k.i(f'v_mul_f32 {v(ZA + i)}, {v(ZA + i)}, {v(RS + i)}')
            for r in range(4):
                i = 4 * rt + r
                k.i(f'v_fma_f32 {v(ZA + i)}, -{v(MR + i)}, {v(vRS)}, {v(ZA + i)}')
        for r in range(4):
            i = 4 * h + r
            k.i(f'v_fma_f32 {v(OA + i)}, {v(ZA + 8 + i)}, {v(vFA)}, {v(ZA + i)}')
            k.i(f'v_mul_f32 {v(OB + i)}, {s(sF)}, {v(ZA + i)}')
        for r in range(4):
            i = 4 * h + r
            k.i(f'v_fmac_f32 {v(OB + i)}, {v(ZA + 8 + i)}, {v(vSB)}')
    for p in range(8):
        k.i(f'v_cvt_pk_f16_f32 {v(OPC + p)}, {v(OA + 2 * p)}, {v(OA + 2 * p + 1)}')
    k.i(f's_mov_b64 exec, {s(sMSP, 2)}')
    for p in range(8):
        k.i(f'v_xor_b32 {v(OPS + p)}, 0x80008000, {v(OPC + p)}')
    for p in range(8):
        k.i(f'v_mov_b32_dpp {v(OPS + p)}, {v(OPC + p)} row_ror:8 row_mask:0xf bank_mask:0x3')
    for p in range(8):
        k.i(f'v_mov_b32_dpp {v(OPC + p)}, {v(OPC + p)} row_ror:8 row_mask:0xf bank_mask:0xc')
    k.i('s_mov_b64 exec, -1')
    TA, TB, XA, XB = ZA, ZA + 4, ZA + 8, ZA + 12
    k.i(f'''v_mfma_f32_16x16x32_f16 {v(TA, 4)}, {v(OPS, 4)}, {v(MM + 4, 4)}, 0
    v_mfma_f32_16x16x32_f16 {v(TB, 4)}, {v(OPS + 4, 4)}, {v(MM + 12, 4)}, 0
    v_mfma_f32_16x16x32_f16 {v(TA, 4)}, {v(OPC, 4)}, {v(MM, 4)}, {v(TA, 4)}
    v_mfma_f32_16x16x32_f16 {v(TB, 4)}, {v(OPC + 4, 4)}, {v(MM + 8, 4)}, {v(TB, 4)}
    v_mfma_f32_16x16x32_f16 {v(XA, 4)}, {v(OPC, 4)}, {v(MM + 16, 4)}, 0
    v_mfma_f32_16x16x32_f16 {v(XB, 4)}, {v(OPS + 4, 4)}, {v(MM + 16, 4)}, 0''')
    P = ACCB + 16
    k.i(f's_mov_b32 {s(sT0)}, {WS_T + layer * T_SZ}\ns_mov_b32 {s(sT1)}, {WS_T + layer * T_SZ + 16 * 57344}')
    for p in range(4):
        k.i(f'v_cvt_pk_f16_f32 {v(P + p)}, {v(TA + 2 * p)}, {v(TA + 2 * p + 1)}')
    k.vm(f'buffer_store_dwordx4 {v(P, 4)}, {v(vTS)}, {s(sWS, 4)}, {s(sT0)} offen sc1')
    for p in range(4):
        k.i(f'v_cvt_pk_f16_f32 {v(P + 4 + p)}, {v(XA + 2 * p)}, {v(XA + 2 * p + 1)}')
    k.i(f's_mov_b64 exec, {s(sMN0, 2)}')
    t = k.vm(f'buffer_store_dwordx4 {v(P + 4, 4)}, {v(vTS)}, {s(sWS, 4)}, {s(sT1)} offen sc1')
    k.i('s_mov_b64 exec, -1')
    return t


SACC = BIG
MN = ACCB + 24


def acc_init(k):
    SEL = RING
    AD, AM_, STP = RING + 4, RING + 5, RING + 6
    MNE = RING + 8
    D = RING + 12
    st = Stream()
    st.i(f'v_lshlrev_b32 {v(vT0)}, 2, {v(vN)}\nv_add_u32 {v(vT0)}, {ST_MEAN}, {v(vT0)}')
    for rt in range(4):
        st.i(f'ds_read_b32 {v(MNE + rt)}, {v(vT0)} offset:{rt * 64}')
    st.i(f'v_cmp_gt_u32 vcc, 2, {v(vG)}')
    e = [0x01000c0c, 0x03020c0c, 0x05040c0c, 0x07060c0c]
    for i in range(4):
        st.i(f'v_mov_b32 {v(vT0)}, {e[i]}\nv_mov_b32 {v(vT1)}, {e[3 - i]}')
        st.i(f'v_cndmask_b32 {v(SEL + i)}, {v(vT1)}, {v(vT0)}, vcc')
    st.i(f'''v_mov_b32 {v(vT0)}, -16
    v_cndmask_b32 {v(STP)}, {v(vT0)}, 16, vcc''')

    def setb(sreg):
        st.i(f'''v_and_b32 {v(vT0)}, 1, {v(vG)}
        v_lshl_add_u32 {v(vT0)}, {v(vT0)}, 3, {s(sreg)}
        v_sub_u32 {v(vT1)}, 890, {v(vT0)}
        v_cndmask_b32 {v(AD)}, {v(vT1)}, {v(vT0)}, vcc
        v_cndmask_b32 {v(AM_)}, {v(vT0)}, {v(vT1)}, vcc
        v_mul_u32_u24 {v(vT0)}, {XP}, {v(vN)}
        v_add_u32 {v(AD)}, {v(AD)}, {v(vT0)}
        v_add_u32 {v(AM_)}, {v(AM_)}, {v(vT0)}''')
    st.i(f's_mul_i32 {s(sT2)}, {s(sWv)}, 96')
    setb(sT2)
    reads, procs = [], []
    n = 0
    for beta in range(7):
        r = Stream()
        if 0 < beta < 6:
            r.i(f'v_add_u32 {v(AD)}, {v(AD)}, {v(STP)}\nv_sub_u32 {v(AM_)}, {v(AM_)}, {v(STP)}')
        if beta == 6:
            save = st
            st = r
            r.i(f's_lshl_b32 {s(sT2)}, {s(sWv)}, 4\ns_add_u32 {s(sT2)}, {s(sT2)}, {24 * 16}')
            r.i(f'v_cmp_gt_u32 vcc, 2, {v(vG)}')
            setb(sT2)
            st = save
        p = Stream()
        for rt in range(4):
            d = D + 2 * (n % 16)
            n += 1
            r.i(f'ds_read_b64 {v(d, 2)}, {v(AD if rt < 2 else AM_)} offset:{XIMG + rt * 16 * XP}')
            ac = SACC + (beta * 4 + rt) * 4
            for i in range(4):
                p.i(f'v_perm_b32 {v(ac + i)}, {v(d + 1)}, {v(d)}, {v(SEL + (i if rt < 2 else 3 - i))}')
            if beta == 0:
                p.i(f'v_mov_b32 {v(MN + rt)}, {v(ac)}')
            for i in range(4):
                p.i(f'v_sub_f32 {v(ac + i)}, {v(ac + i)}, {v(MNE + rt)}')
        reads.append(r)
        procs.append(p)
    first = st
    first.extend(reads[0])
    first.extend(reads[1])
    for b in range(3):
        first.extend(reads[b + 2])
        first.extend(procs[b])
    second = Stream()
    for b in range(3, 7):
        if b + 2 < 7:
            second.extend(reads[b + 2])
        second.extend(procs[b])
    return first, second


def sync_T(k, layer, tok, part1, part2):
    k.extend(part1)
    k.waitvm(tok)
    k.barrier()
    stamp(k, f'L{layer} T acked')
    sk = lab('t0')
    k.i(f's_cmp_lg_u32 {s(sWv)}, 0\ns_cbranch_scc1 {sk}')
    k.cond_begin()
    if layer == 0:
        k.i(f'v_and_b32 {v(vT0)}, 3, {v(vL)}\nv_lshlrev_b32 {v(vT0)}, 2, {v(vT0)}')
        spin_loop(k, f'buffer_load_dword {v(vPOLL)}, {v(vT0)}, {s(sDBG, 4)}, 0 offen sc1', 1, False)
    k.i(f'''s_lshl_b32 {s(sT2)}, {s(sXCD)}, 7
    s_add_u32 {s(sT2)}, {s(sT2)}, {WS_CT + layer * 8192}
    v_lshl_add_u32 {v(vT0)}, {v(vL)}, 10, {s(sT2)}
    s_mov_b64 exec, 0xff''')
    k.vm(f'buffer_atomic_add {v(vONE)}, {v(vT0)}, {s(sWS, 4)}, 0 offen sc1')
    k.i('s_mov_b64 exec, -1')
    k.cond_end()
    k.i(f'{sk}:')
    k.extend(part2)
    sk = lab('t1')
    k.i(f's_cmp_lg_u32 {s(sWv)}, 0\ns_cbranch_scc1 {sk}')
    k.cond_begin()
    k.i(f'''s_lshl_b32 {s(sT2)}, {s(sXCD)}, 10
    s_add_u32 {s(sT2)}, {s(sT2)}, {WS_CT + layer * 8192}
    v_and_b32 {v(vT0)}, 7, {v(vL)}
    v_lshl_add_u32 {v(vT0)}, {v(vT0)}, 7, {s(sT2)}''')
    spin_loop(k, f'buffer_load_dword {v(vPOLL)}, {v(vT0)}, {s(sWS, 4)}, 0 offen sc1', 28, False)
    k.cond_end()
    k.i(f'{sk}:')
    k.barrier()
    stamp(k, f'L{layer} T seen')


def w1_loads(ks_list):
    st = Stream()
    for ks in ks_list:
        g = Stream()
        g.i(f's_add_u32 {s(sT5)}, {s(sW1B)}, {ks * 4096}')
        g.vm(f'buffer_load_dwordx4 {a_(16 * ks, 4)}, {v(vL16)}, {s(sWS, 4)}, {s(sT5)} offen')
        st.group(g)
        for ft in range(1, 4):
            st.vm(f'buffer_load_dwordx4 {a_(16 * ks + 4 * ft, 4)}, {v(vL16)}, {s(sWS, 4)}, {s(sT5)} offen offset:{ft * 1024}')
    return st


def w2reg(kk, nt):
    return v(BIG + 16 * kk + 4 * nt, 4) if kk < 7 else a_(16 * (kk - 7) + 4 * nt, 4)


def w2_loads(kk):
    st = Stream()
    g = Stream()
    g.i(f's_lshl1_add_u32 {s(sT5)}, {s(sROT + (kk >> 1))}, {s(sW2B)}')
    if kk & 1:
        g.i(f's_add_u32 {s(sT5)}, {s(sT5)}, 4096')
    g.vm(f'buffer_load_dwordx4 {w2reg(kk, 0)}, {v(vL16)}, {s(sWS, 4)}, {s(sT5)} offen')
    st.group(g)
    for nt in range(1, 4):
        st.vm(f'buffer_load_dwordx4 {w2reg(kk, nt)}, {v(vL16)}, {s(sWS, 4)}, {s(sT5)} offen offset:{nt * 1024}')
    return st


PK = RING


def stage2(k, layer):
    AF = ACCA
    WD, WM, WD1, WM1 = ACCB, ACCB + 1, ACCB + 2, ACCB + 3
    k.i(f'''s_mul_i32 {s(sT0)}, {s(sK)}, 57344
    s_add_u32 {s(sT0)}, {s(sT0)}, {WS_T + layer * T_SZ}
    s_lshl_b32 {s(sT1)}, {s(sWv)}, 11
    s_add_u32 {s(sT1)}, {s(sT1)}, {s(sT0)}
    s_add_u32 {s(sT1)}, {s(sT1)}, {24 * 2048}
    s_mul_i32 {s(sT2)}, {s(sWv)}, 12288
    s_add_u32 {s(sT0)}, {s(sT0)}, {s(sT2)}
    s_mul_i32 {s(sT3)}, {s(sWv)}, 14336''')
    toks = []
    for p in range(4):
        k.i(f's_add_u32 m0, {s(sT3)}, {TIMG + p * 4096}')
        if 0 < p < 3:
            k.i(f's_add_u32 {s(sT0)}, {s(sT0)}, 4096')
        for i in range(4 if p < 3 else 2):
            t = k.vm(f'buffer_load_dwordx4 {v(vL16)}, {s(sWS, 4)}, {s(sT0 if p < 3 else sT1)} offen offset:{i * 1024} sc1 lds')
        toks.append(t)
    k.i(f'''s_add_u32 {s(sT2)}, {s(sT2)}, {X1IMG}
    v_add_u32 {v(WD)}, {s(sT2)}, {v(vL16)}
    v_xor_b32 {v(vT0)}, 512, {v(vL16)}
    v_add_u32 {v(WM)}, {s(sT2)}, {v(vT0)}
    s_lshr_b32 {s(sT2)}, {s(sWv)}, 1
    s_lshl_b32 {s(sT2)}, {s(sT2)}, 12
    s_and_b32 {s(sT3)}, {s(sWv)}, 1
    s_lshl_b32 {s(sT3)}, {s(sT3)}, 3
    s_add_u32 {s(sT2)}, {s(sT2)}, {s(sT3)}
    s_add_u32 {s(sT2)}, {s(sT2)}, {X1IMG + 12 * 4096}
    v_add_u32 {v(WD1)}, {s(sT2)}, {v(vL16)}
    v_add_u32 {v(WM1)}, {s(sT2)}, {v(vT0)}''')
    w1 = w1_loads(range(14) if layer == 0 else range(7))
    nw = len(w1)
    cut = [0, nw * 4 // 7, nw * 5 // 7, nw * 6 // 7, nw]
    k.extend(w1[cut[0]:cut[1]])

    def reads(p):
        r = Stream()
        r.waitvm(toks[p])
        for bl in range(2 if p < 3 else 1):
            for ks2 in range(2):
                for h in range(2):
                    d = AF + 16 * (p & 1) + 8 * bl + 4 * ks2 + 2 * h
                    r.i(f'ds_read_b64_tr_b16 {v(d, 2)}, {v(vTR)} offset:{TIMG + p * 4096 + bl * 2048 + ks2 * 1024 + h * 512}')
        return r

    def post(p, rt):
        f = Stream()
        nb = 2 if p < 3 else 1
        pk = PK + 16 * p + 2 * nb * rt
        for bl in range(nb):
            ac = SACC + ((2 * p + bl) * 4 + rt) * 4
            f.i(f'v_cvt_pk_bf16_f32 {v(pk + 2 * bl)}, {v(ac)}, {v(ac + 1)}')
            f.i(f'v_cvt_pk_bf16_f32 {v(pk + 2 * bl + 1)}, {v(ac + 2)}, {v(ac + 3)}')
        if p < 3:
            f.i(f'ds_write_b128 {v(WD if rt < 2 else WM)}, {v(pk, 4)} offset:{p * 4096 + rt * 1024}')
        else:
            f.i(f'ds_write_b64 {v(WD1 if rt < 2 else WM1)}, {v(pk, 2)} offset:{rt * 1024}')
        return f

    k.extend(reads(0))
    pend = Stream()
    for p in range(4):
        nb = 2 if p < 3 else 1
        for rt in range(4):
            if p == 0 and rt == 2:
                sk = lab('fx')
                k.i(f's_cmp_lg_u32 {s(sWv)}, 0\ns_cbranch_scc1 {sk}')
                k.cond_begin()
                k.i(f's_mov_b32 exec_lo, 0x01010101\ns_mov_b32 exec_hi, 0x01010101')
                for r in range(8):
                    k.i(f'v_mov_b32_dpp {v(AF + r)}, {v(AF + r)} row_ror:8 row_mask:0xf bank_mask:0xf')
                k.i('s_mov_b64 exec, -1')
                k.cond_end()
                k.i(f'{sk}:')
            g = Stream()
            for ks2 in range(2):
                for bl in range(nb):
                    ac = SACC + ((2 * p + bl) * 4 + rt) * 4
                    g.i(f'v_mfma_f32_16x16x32_f16 {v(ac, 4)}, {v(AF + 16 * (p & 1) + 8 * bl + 4 * ks2, 4)}, {a_(aG + 8 * rt + 4 * ks2, 4)}, {v(ac, 4)}')
            k.extend(weave(g, pend))
            pend = post(p, rt)
            if rt == 1 and p < 3:
                k.extend(reads(p + 1))
        if p < 3:
            k.extend(w1[cut[p + 1]:cut[p + 2]])
    k.extend(pend)
    sk = lab('m1')
    k.i(f's_cmp_lg_u32 {s(sWv)}, 0\ns_cbranch_scc1 {sk}')
    k.cond_begin()
    for rt in range(4):
        k.i(f'v_sub_f32 {v(MN + rt)}, {v(MN + rt)}, {v(SACC + 4 * rt)}')
    k.i(f'v_lshlrev_b32 {v(vT0)}, 2, {v(vN)}\nv_add_u32 {v(vT0)}, {ST_M1}, {v(vT0)}')
    k.i('s_mov_b64 exec, 0xffff')
    k.i(f'ds_write_b32 {v(vT0)}, {v(MN)}\nds_write_b32 {v(vT0)}, {v(MN + 1)} offset:64')
    k.i('s_mov_b32 exec_lo, 0\ns_mov_b32 exec_hi, 0xffff')
    k.i(f'ds_write_b32 {v(vT0)}, {v(MN + 2)} offset:128\nds_write_b32 {v(vT0)}, {v(MN + 3)} offset:192')
    k.i('s_mov_b64 exec, -1')
    k.drain_lgkm()
    k.cond_end()
    k.i(f'{sk}:')
    k.barrier()
    stamp(k, f'L{layer} stage2 done')


def ssq_stream():
    f = Stream()
    S = ACCB + 24
    for rt in range(4):
        f.i(f'v_mov_b32 {v(S + rt)}, 0')
    for p in range(4):
        n = 4 if p < 3 else 2
        for i in range(n):
            for rt in range(4):
                r = PK + 16 * p + n * rt + i
                f.i(f'v_dot2c_f32_bf16 {v(S + rt)}, {v(r)}, {v(r)}')
    f.i(f'''v_permlane32_swap_b32 {v(S)}, {v(S + 1)}
    v_permlane32_swap_b32 {v(S + 2)}, {v(S + 3)}
    v_add_f32 {v(S)}, {v(S)}, {v(S + 1)}
    v_add_f32 {v(S + 2)}, {v(S + 2)}, {v(S + 3)}''')
    f.i(f'''v_and_b32 {v(S + 1)}, 1, {v(vG)}
    v_lshlrev_b32 {v(S + 1)}, 9, {v(S + 1)}
    v_lshrrev_b32 {v(S + 3)}, 1, {v(vG)}
    v_lshl_add_u32 {v(S + 1)}, {v(S + 3)}, 8, {v(S + 1)}
    v_permlane16_swap_b32 {v(S)}, {v(S + 2)}
    v_lshl_add_u32 {v(S + 1)}, {v(vN)}, 4, {v(S + 1)}''')
    g = Stream()
    g.i(f'''s_lshl_b32 {s(sT4)}, {s(sWv)}, 2
    s_add_u32 {s(sT4)}, {s(sT4)}, {ST_SSQ}
    v_add_u32 {v(S + 1)}, {s(sT4)}, {v(S + 1)}''')
    f.group(g)
    f.i(f'v_add_f32 {v(S)}, {v(S)}, {v(S + 2)}')
    f.i(f'ds_write_b32 {v(S + 1)}, {v(S)}')
    return f


def ffn1_main(hf, BF):
    acc = ACCA if hf == 0 else ACCB
    g = Stream()

    def rd(ks, rho):
        g.i(f'ds_read_b128 {v(BF + 8 * (ks % 3) + 4 * rho, 4)}, {v(vB0 + rho)} offset:{ks * 4096 + hf * 2048}')
    rd(0, 0); rd(0, 1); rd(1, 0); rd(1, 1)
    for ks in range(14):
        for rho in range(2):
            for ft in range(4):
                c = acc + 8 * ft + 4 * rho
                src = '0' if ks == 0 else v(c, 4)
                g.i(f'v_mfma_f32_16x16x32_bf16 {v(c, 4)}, {a_(16 * ks + 4 * ft, 4)}, {v(BF + 8 * (ks % 3) + 4 * rho, 4)}, {src}')
                if ft == 0 and ks + 2 < 14:
                    rd(ks + 2, rho)
    return g


HOWN = [RING + 24, RING + 40]


def ffn1_epi(hf, layer):
    acc = ACCA if hf == 0 else ACCB
    f = Stream()
    tok = None
    for u in range(2):
        for rho in range(2):
            h = HOWN[hf] + 8 * u + 4 * rho
            for t in range(2):
                c = acc + 8 * (2 * u + t) + 4 * rho
                f.i(f'v_cvt_pk_bf16_f32 {v(h + 2 * t)}, {v(c)}, {v(c + 1)}')
                f.i(f'v_cvt_pk_bf16_f32 {v(h + 2 * t + 1)}, {v(c + 2)}, {v(c + 3)}')
            for r in range(4):
                f.i(f'v_pk_max_i16 {v(h + r)}, {v(h + r)}, 0')
            g = Stream()
            g.i(f's_add_u32 {s(sT4)}, {s(sHB)}, {s(sROT)}')
            if hf or layer:
                g.i(f's_add_u32 {s(sT4)}, {s(sT4)}, {hf * 114688 + layer * H_SZ}')
            tok = g.vm(f'buffer_store_dwordx4 {v(h, 4)}, {v(vL16)}, {s(sWS, 4)}, {s(sT4)} offen offset:{(2 * u + rho) * 1024} sc1')
            f.group(g)
    return f, tok


def h_signal(tok, hf, layer):
    g = Stream()
    g.waitvm(tok)
    g.i(f'''s_lshl_b32 {s(sT4)}, {s(sWv)}, 7
    s_add_u32 {s(sT4)}, {s(sT4)}, {s(sCH)}
    s_mov_b64 exec, 1''')
    g.vm(f'buffer_atomic_add {v(vONE)}, off, {s(sWS, 4)}, {s(sT4)} offset:{(layer * 8 + hf * 4) * 128} sc1')
    g.i('s_mov_b64 exec, -1')
    return g


def h_poll_text(hf, layer):
    return f'buffer_load_dword {v(vPOLL)}, off, {s(sWS, 4)}, {s(sT3)} offset:{(layer * 8 + hf * 4) * 128} sc1'


def h_poll_issue(hf, layer):
    g = Stream()
    g.i(f's_lshl_b32 {s(sT3)}, {s(sWv)}, 7\ns_add_u32 {s(sT3)}, {s(sT3)}, {s(sCH)}')
    g.vm(h_poll_text(hf, layer))
    return g


def ffn2_mfma(g, hf, kk, rho, breg):
    acc = ACCA if hf == 0 else ACCB
    for nt in range(4):
        c = acc + 16 * rho + 4 * nt
        src = '0' if kk == 0 else v(c, 4)
        g.i(f'v_mfma_f32_16x16x32_bf16 {v(c, 4)}, {w2reg(kk, nt)}, {breg}, {src}')


NRING = 14


def red_write(hf):
    acc = ACCA if hf == 0 else ACCB
    red = REDA if hf == 0 else REDB
    f = Stream()
    for sg in range(1, 4):
        f.i(f'v_xor_b32 {v(vT0)}, {sg << 11}, {v(vRW)}')
        f.i(f'v_add_u32 {v(vT0)}, {red + (sg - 1) * 8192}, {v(vT0)}')
        for u in range(2):
            f.i(f'ds_write_b128 {v(vT0)}, {v(acc + 8 * sg + 4 * u, 4)} offset:{u * 1024}')
    return f


def red_finish(hf, layer, tmp):
    acc = ACCA if hf == 0 else ACCB
    red = REDA if hf == 0 else REDB
    f = Stream()
    R, EX, M1, SQ = tmp, tmp + 4, tmp + 5, tmp + 8
    f.i(f'v_add_u32 {v(vT1)}, {red}, {v(vRW)}')
    for sg in range(1, 4):
        for u in range(2):
            f.i(f'ds_read_b128 {v(acc + 8 * sg + 4 * u, 4)}, {v(vT1)} offset:{(sg - 1) * 8192 + u * 1024}')
    f.i(f'v_lshlrev_b32 {v(vT1)}, 2, {v(vSTA)}')
    f.i(f'v_add_u32 {v(vT1)}, {ST_SSQ + hf * 512}, {v(vT1)}')
    f.i(f'ds_read_b128 {v(SQ, 4)}, {v(vT1)}')
    f.i(f'v_add_u32 {v(vT1)}, {ST_M1 + hf * 128}, {v(vSTA)}')
    f.i(f'ds_read_b32 {v(M1)}, {v(vT1)}')
    f.i(f'ds_read_b64 {v(R, 2)}, {v(vRA0)} offset:{hf * 2048}')
    f.i(f'ds_read_b64 {v(R + 2, 2)}, {v(vRA0)} offset:{hf * 2048 + 256}')
    f.i(f'ds_read_b32 {v(EX)}, {v(vRA1)} offset:{hf * 2048}')
    for r in range(8):
        f.i(f'v_add_f32 {v(acc + r)}, {v(acc + r)}, {v(acc + 8 + r)}')
    for r in range(8):
        f.i(f'v_add_f32 {v(acc + 16 + r)}, {v(acc + 16 + r)}, {v(acc + 24 + r)}')
    f.i(f'''v_add_f32 {v(SQ)}, {v(SQ)}, {v(SQ + 1)}
    v_add_f32 {v(SQ + 2)}, {v(SQ + 2)}, {v(SQ + 3)}
    v_add_f32 {v(SQ)}, {v(SQ)}, {v(SQ + 2)}
    v_mov_b32 {v(SQ + 1)}, {fl(1e-5)}
    v_fmac_f32 {v(SQ + 1)}, {fl(1.0 / 448)}, {v(SQ)}
    v_rsq_f32 {v(SQ)}, {v(SQ + 1)}''')
    for r in range(8):
        f.i(f'v_add_f32 {v(acc + r)}, {v(acc + r)}, {v(acc + 16 + r)}')
    for i in range(8):
        up = EX if i == 0 else R + ((8 - i) >> 1)
        f.i(f'v_perm_b32 {v(acc + 8 + i)}, {v(up)}, {v(R + (i >> 1))}, {s(sSELO if i & 1 else sSELE)}')
    for i in range(8):
        f.i(f'v_add_f32 {v(acc + 8 + i)}, {v(acc + 8 + i)}, {v(M1)}')
    for i in range(8):
        f.i(f'v_fmac_f32 {v(acc + 8 + i)}, {v(acc + i)}, {v(SQ)}')
    for p in range(4):
        f.i(f'v_cvt_pk_bf16_f32 {v(acc + 16 + p)}, {v(acc + 8 + 2 * p)}, {v(acc + 9 + 2 * p)}')
    g = Stream()
    if layer == 0:
        g.i(f's_mov_b32 {s(sT4)}, {WS_X2}')
        tok = g.vm(f'buffer_store_dwordx4 {v(acc + 16, 4)}, {v(vO0 + hf)}, {s(sWS, 4)}, {s(sT4)} offen sc1')
    else:
        tok = g.vm(f'buffer_store_dwordx4 {v(acc + 16, 4)}, {v(vO0 + hf)}, {s(sOUT, 4)}, 0 offen sc1')
    f.group(g)
    return f, tok


def ffn(k, layer):
    m = ffn1_main(0, ACCB)
    ld = Stream()
    for kk in range(7):
        ld.extend(w2_loads(kk))
    m = weave(m, ld, 0, 108)
    m = weave(m, ssq_stream(), 4, 100)
    k.extend(m)
    m = ffn1_main(1, RING)
    epi, tokA = ffn1_epi(0, layer)
    out = m
    for kk in range(7, 14):
        lo = max(8 * (kk - 7 + 1), 26 + 11 * (kk - 7))
        out = weave(out, w2_loads(kk), lo, lo + 10)
    out = weave(out, epi, 1, 25)
    sig = Stream()
    sig.group(h_signal(tokA, 0, layer))
    out = weave(out, sig, 76, 77)
    k.extend(out)
    stamp(k, f'L{layer} ffn1 done')
    k.extend(h_poll_issue(0, layer))
    g = Stream()
    for kk in range(2):
        for rho in range(2):
            ffn2_mfma(g, 0, kk, rho, v(HOWN[0] + 8 * kk + 4 * rho, 4))
    epi, tokB = ffn1_epi(1, layer)
    k.extend(weave(g, epi, 1, 16))
    g = Stream()
    for kk in range(2):
        for rho in range(2):
            ffn2_mfma(g, 1, kk, rho, v(HOWN[1] + 8 * kk + 4 * rho, 4))
    k.extend(g)
    spin_loop(k, h_poll_text(0, layer), 7, True)
    stamp(k, f'L{layer} hA seen')

    def hload(st, n):
        hf, kk, rho = n // 24, 2 + (n % 24) // 2, n & 1
        if n % 4 == 0:
            st.i(f's_add_u32 {s(sT5)}, {s(sHB)}, {s(sROT + (kk >> 1))}')
            if hf or layer:
                st.i(f's_add_u32 {s(sT5)}, {s(sT5)}, {hf * 114688 + layer * H_SZ}')
        st.vm(f'buffer_load_dwordx4 {v(RING + 4 * (n % NRING), 4)}, {v(vL16)}, {s(sWS, 4)}, {s(sT5)} offen offset:{(n % 4) * 1024} sc1')
    for n in range(NRING):
        hload(k, n)
    k.extend(h_signal(tokB, 1, layer))
    toks = []
    mainB = Stream()
    for n in range(48):
        hf, kk, rho = n // 24, 2 + (n % 24) // 2, n & 1
        st = k if hf == 0 else mainB
        ffn2_mfma(st, hf, kk, rho, v(RING + 4 * (n % NRING), 4))
        nn = n + NRING
        if n == 6:
            k.extend(h_poll_issue(1, layer))
        if hf == 0 and nn >= 24:
            if n == 19:
                spin_loop(k, h_poll_text(1, layer), 7, True)
                for x in range(24, 20 + NRING):
                    hload(k, x)
            elif n > 19:
                hload(k, nn)
        elif nn < 48:
            hload(st, nn)
    fin, tok0 = red_finish(0, layer, BIG)
    bar = Stream()
    b = Stream()
    b.barrier()
    bar.group(b)
    mainB = weave(mainB, fin, 30, 70)
    mainB = weave(mainB, bar, 26, 27)
    mainB = weave(mainB, red_write(0), 2, 14)
    k.extend(mainB)
    stamp(k, f'L{layer} ffn2 done')
    k.extend(red_write(1))
    k.barrier()
    fin, tok1 = red_finish(1, layer, BIG)
    k.extend(fin)
    return tok1


def sync_X(k, tok, part1, part2):
    k.extend(part1)
    k.waitvm(tok)
    k.barrier()
    stamp(k, 'x2 acked')
    sk = lab('x0')
    k.i(f's_cmp_lg_u32 {s(sWv)}, 0\ns_cbranch_scc1 {sk}')
    k.cond_begin()
    k.i('s_mov_b64 exec, 1')
    k.vm(f'buffer_atomic_add {v(vONE)}, off, {s(sWS, 4)}, {s(sCH)} offset:{16 * 128} sc1')
    k.i('s_mov_b64 exec, -1')
    k.cond_end()
    k.i(f'{sk}:')
    k.extend(part2)
    sk = lab('x1')
    k.i(f's_cmp_lg_u32 {s(sWv)}, 0\ns_cbranch_scc1 {sk}')
    k.cond_begin()
    spin_loop(k, f'buffer_load_dword {v(vPOLL)}, off, {s(sWS, 4)}, {s(sCH)} offset:{16 * 128} sc1', 7, False)
    k.cond_end()
    k.i(f'{sk}:')
    k.barrier()
    stamp(k, 'x2 seen')


def dump_stamps(k):
    if not PROF:
        return
    k.drain_vm()
    stamp(k, 'end')
    n = nstamp[0]
    k.i(f'v_mov_b32 {v(vT0)}, 0')
    for i in range(n):
        k.i(f'v_writelane_b32 {v(vT0)}, {s(sSTAMP + i)}, {i}')
    k.i(f'''s_lshl_b32 {s(sT2)}, s2, 2
    s_add_u32 {s(sT2)}, {s(sT2)}, {s(sWv)}
    s_lshl_b32 {s(sT2)}, {s(sT2)}, 8
    s_add_u32 {s(sT2)}, {s(sT2)}, {WS_PROF}
    v_lshlrev_b32 {v(vT1)}, 2, {v(vL)}''')
    k.vm(f'buffer_store_dword {v(vT0)}, {v(vT1)}, {s(sWS, 4)}, {s(sT2)} offen')


def build():
    k = Stream()
    if PROF:
        k.i(f's_memrealtime {s(96, 2)}')
    setup(k)
    if PROF:
        nstamp[0] = 1
        stampnames.append('start')
        k.i(f's_mov_b32 {s(sSTAMP)}, s96')
    stamp(k, 'kernarg')
    zt = zero_flags(k)
    xt = x_dma(k, 0)
    ct = conv_issue(k)
    consts(k)
    set_ready(k, zt)
    gen_RD(k, True)
    gen_M(k)
    conv_finish(k, ct)
    stamp(k, 'pre done')
    for layer in range(2):
        tok = phase_a(k, layer, xt)
        p1, p2 = acc_init(k)
        if layer == 0:
            gen_G(p2)
        sync_T(k, layer, tok, p1, p2)
        stage2(k, layer)
        tok = ffn(k, layer)
        if layer == 0:
            p1, p2 = Stream(), Stream()
            gen_RD(p1, False)
            gen_M(p2)
            sync_X(k, tok, p1, p2)
            xt = x_dma(k, 1)
    dump_stamps(k)
    k.i('L_end:')
    k.i('s_endpgm')
    body, ins = render(k)
    hdr = open('interleave_layers__spectral_fnet__dense_activation_relu__prompt.s.ref').read()
    hdr = hdr[:hdr.index('; @launch')]
    out = hdr + f'; @launch grid=(224,1,1) block=(256,1,1) lds={LDS_SZ}\n'
    out += f'''.amdgcn_target "amdgcn-amd-amdhsa--gfx950"
.text
.globl {KN}
.p2align 8
.type {KN},@function
{KN}:
'''
    out += body
    out += f'''L_code_end:
.set CODE_LAST_LINE, L_code_end - {KN} - 128
.section .rodata,"a"
.p2align 6
.amdhsa_kernel {KN}
  .amdhsa_next_free_vgpr 512
  .amdhsa_next_free_sgpr 102
  .amdhsa_accum_offset 256
  .amdhsa_group_segment_fixed_size 0
  .amdhsa_kernarg_size 88
  .amdhsa_user_sgpr_count 2
  .amdhsa_user_sgpr_kernarg_segment_ptr 1
  .amdhsa_system_sgpr_workgroup_id_x 1
  .amdhsa_float_denorm_mode_32 3
.end_amdhsa_kernel
'''
    return out, ins


if __name__ == '__main__':
    out, ins = build()
    path = [x for x in sys.argv[1:] if not x.startswith('--')][0]
    open(path, 'w').write(out)
    import collections
    c = collections.Counter(x.cls for x in ins if isinstance(x, Ins))
    print(path, dict(c), 'nops', sum(1 for x in ins if isinstance(x, Ins) and x.mn == 's_nop'))
    if PROF:
        open(path + '.stamps', 'w').write('\n'.join(stampnames))
```

```python
import sys, struct
from asmdsl import *

KN = 'interleave_layers__spectral_fnet__dense_activation_relu__prompt_kernel'
PROF = '--prof' in sys.argv
CLK = 's_memtime' if '--cyc' in sys.argv else 's_memrealtime'
X = set(a[4:] for a in sys.argv if a.startswith('--x-'))
SPIN = 1 << 17

WS_CT = 0
WS_CH = 16384
WS_W1F = 0x40000
WS_W2F = WS_W1F + 1605632
WS_T = WS_W2F + 1605632
T_SZ = 17 * 57344
WS_X2 = WS_T + 2 * T_SZ
WS_H = WS_X2 + 1835008
H_SZ = 7340032
WS_PROF = WS_H + 2 * H_SZ
WS_END = WS_PROF + 0x40000
XP = 928
XIMG = 0
TIMG = 0
X1IMG = 59392
REDA = 116736
REDB = 29696
ST_RSTD = 141312
ST_MR = ST_RSTD + 256
ST_MEAN = ST_RSTD + 512
ST_M1 = ST_RSTD + 768
ST_SSQ = ST_RSTD + 1024
LDS_SZ = ST_SSQ + 1024
sX, sWS, sOUT, sW, sDBG = 4, 8, 12, 16, 20
sQ, sJ, sWv, sA, sAM, sK, sXCD, sB = 24, 25, 26, 27, 28, 29, 30, 31
sT0, sT1, sT2, sT3, sT4, sT5 = 32, 33, 34, 35, 36, 37
sF = 38
sSPIN = 39
sM57 = 40
sMSP = 42
sMN0 = 44
sMC3 = 46
sROT = 48
sHB = 55
sW1B, sW2B = 56, 57
sSELE, sSELO = 58, 59
sONES = 60
sCH = 61
sPC = 62
sSTAMP = 64
vL, vL16, vN, vG = 0, 1, 2, 3
vXD, vXA, vSA, vRS = 4, 5, 6, 7
vFA, vSB, vTS, vTR = 8, 9, 10, 11
vB0, vB1 = 12, 13
vRW = 14
vO0, vO1 = 15, 16
vRA0, vRA1 = 17, 18
vSTA = 19
vONE, vPOLL = 20, 21
vT0, vT1 = 22, 23
BIG = 24
ACCA, ACCB = 136, 168
RING = 200
aG = 224


def v(a, n=1):
    return f'v{a}' if n == 1 else f'v[{a}:{a + n - 1}]'


def a_(a, n=1):
    return f'a{a}' if n == 1 else f'a[{a}:{a + n - 1}]'


def s(a, n=1):
    return f's{a}' if n == 1 else f's[{a}:{a + n - 1}]'


def fl(x):
    return '0x%08x' % struct.unpack('<I', struct.pack('<f', x))[0]


nlab = [0]


def lab(p):
    nlab[0] += 1
    return f'L_{p}_{nlab[0]}'


nstamp = [0]
stampnames = []


def stamp(k, name):
    if not PROF:
        return
    i = nstamp[0]
    nstamp[0] += 1
    stampnames.append(name)
    k.i(f'{CLK} {s(98, 2)}')
    k.drain_lgkm()
    k.i(f's_mov_b32 {s(sSTAMP + i)}, s98')


def srd(k, d, lo, hi, size):
    k.i(f's_mov_b32 {s(d)}, {s(lo)}\ns_and_b32 {s(d + 1)}, {s(hi)}, 0xffff\ns_mov_b32 {s(d + 2)}, {size}\ns_mov_b32 {s(d + 3)}, 0x20000')


def spin_loop(k, load, target, first_done):
    ok, lp = lab('ok'), lab('sp')
    if first_done:
        k.i(f'v_cmp_ne_u32 vcc, {target}, {v(vPOLL)}')
        k.i(f's_cbranch_vccz {ok}')
    k.cond_begin()
    k.i(f's_mov_b32 {s(sSPIN)}, {SPIN}')
    k.i(f'{lp}:')
    k.i(load)
    k.i('s_waitcnt vmcnt(0)')
    k.i(f'v_cmp_ne_u32 vcc, {target}, {v(vPOLL)}')
    k.i(f's_sub_u32 {s(sSPIN)}, {s(sSPIN)}, 1')
    k.i(f's_cbranch_scc1 {ok}')
    k.i(f's_cbranch_vccnz {lp}')
    k.cond_end()
    k.i(f'{ok}:')


def setup(k):
    k.i(f's_cmp_ge_u32 s2, 224\ns_cbranch_scc1 L_end')
    k.i(f's_load_dwordx2 {s(32, 2)}, s[0:1], 0')
    k.i(f's_load_dwordx4 {s(64, 4)}, s[0:1], 48')
    k.i(f's_load_dwordx4 {s(68, 4)}, s[0:1], 64')
    k.i(f's_load_dwordx2 {s(72, 2)}, s[0:1], 80')
    k.i(f's_getpc_b64 {s(sPC, 2)}')
    k.i(f'v_lshlrev_b32 {v(vT0)}, 7, v0')
    k.i(f'v_min_u32 {v(vT1)}, CODE_LAST_LINE, {v(vT0)}')
    k.i(f'global_load_dword {v(RING + 54)}, {v(vT1)}, {s(sPC, 2)}')
    k.i(f'v_add_u32 {v(vT0)}, 0x8000, {v(vT0)}')
    k.i(f'v_min_u32 {v(vT0)}, CODE_LAST_LINE, {v(vT0)}')
    k.i(f'global_load_dword {v(RING + 55)}, {v(vT0)}, {s(sPC, 2)}')
    k.i(f'v_lshrrev_b32 {v(vT1)}, 6, v0')
    k.i(f'v_and_b32 {v(vL)}, 63, v0')
    k.i(f'v_readfirstlane_b32 {s(sWv)}, {v(vT1)}')
    k.i(f'''s_and_b32 {s(sXCD)}, s2, 7
    s_lshr_b32 {s(sT2)}, s2, 3
    s_mul_i32 {s(sT3)}, {s(sT2)}, 37
    s_lshr_b32 {s(sT3)}, {s(sT3)}, 8
    s_lshl_b32 {s(sQ)}, {s(sXCD)}, 2
    s_add_u32 {s(sQ)}, {s(sQ)}, {s(sT3)}
    s_mul_i32 {s(sT3)}, {s(sT3)}, 7
    s_sub_u32 {s(sJ)}, {s(sT2)}, {s(sT3)}
    s_lshr_b32 {s(sA)}, {s(sQ)}, 1
    s_and_b32 {s(sT2)}, {s(sQ)}, 1
    s_lshl_b32 {s(sT2)}, {s(sT2)}, 5
    s_add_u32 {s(sA)}, {s(sA)}, {s(sT2)}
    s_cmp_eq_u32 {s(sQ)}, 1
    s_cselect_b32 {s(sA)}, 16, {s(sA)}
    s_cmp_eq_u32 {s(sQ)}, 0
    s_cselect_b32 {s(sAM)}, 32, {s(sA)}
    s_cselect_b32 {s(sF)}, 0, 1.0
    s_and_b32 {s(sK)}, {s(sA)}, 31
    s_lshl_b32 {s(sB)}, {s(sJ)}, 2
    s_add_u32 {s(sB)}, {s(sB)}, {s(sWv)}
    s_mov_b32 {s(sM57)}, -1
    s_mov_b32 {s(sM57 + 1)}, 0x01ffffff''')
    k.i(f'''v_lshlrev_b32 {v(vL16)}, 4, {v(vL)}
    v_and_b32 {v(vN)}, 15, {v(vL)}
    v_lshrrev_b32 {v(vG)}, 4, {v(vL)}
    v_mov_b32 {v(vT0)}, 448
    v_cmp_eq_u32 vcc, 56, {v(vL)}
    v_cndmask_b32 {v(vXD)}, {v(vL16)}, {v(vT0)}, vcc''')
    k.drain_lgkm()
    srd(k, sX, 32, 33, 1835008)
    srd(k, sWS, 72, 73, WS_END)
    k.i(f's_cmp_lt_u32 {s(sQ)}, 14')
    k.i(f's_cselect_b32 {s(64)}, {s(64)}, {s(66)}\ns_cselect_b32 {s(65)}, {s(65)}, {s(67)}')
    srd(k, sW, 64, 65, 1605632)
    srd(k, sOUT, 68, 69, 1835008)
    srd(k, sDBG, 70, 71, 256)


def consts(k):
    k.i(f'''s_mov_b32 {s(sONES)}, 0x3f803f80
    s_mov_b32 {s(sMN0)}, 0x00010001
    s_mov_b32 {s(sMN0 + 1)}, 0x00010001
    s_mov_b32 {s(sMC3)}, 0x00070007
    s_mov_b32 {s(sMC3 + 1)}, 0x00070007
    s_cmp_eq_u32 {s(sB)}, 0
    s_cselect_b32 {s(sMSP)}, 0xfefefefe, -1
    s_mov_b32 {s(sMSP + 1)}, {s(sMSP)}
    s_lshl_b32 {s(sCH)}, {s(sQ)}, 12
    s_add_u32 {s(sCH)}, {s(sCH)}, {WS_CH}
    s_mul_i32 {s(sW1B)}, {s(sB)}, 57344
    s_add_u32 {s(sW2B)}, {s(sW1B)}, {WS_W2F}
    s_add_u32 {s(sW1B)}, {s(sW1B)}, {WS_W1F}''')
    for i in range(7):
        k.i(f'''s_add_u32 {s(sT2)}, {s(sJ)}, {i}
        s_cmp_ge_u32 {s(sT2)}, 7
        s_cselect_b32 {s(sT3)}, 7, 0
        s_sub_u32 {s(sT2)}, {s(sT2)}, {s(sT3)}
        s_lshl_b32 {s(sROT + i)}, {s(sT2)}, 12''')
    k.i(f'''s_lshl_b32 {s(sT2)}, {s(sQ)}, 3
    s_add_u32 {s(sT2)}, {s(sT2)}, {s(sWv)}
    s_mul_i32 {s(sHB)}, {s(sT2)}, 28672
    s_add_u32 {s(sHB)}, {s(sHB)}, {WS_H}''')
    k.i(f'v_mov_b32 {v(vONE)}, 1')
    k.i(f'''v_mul_u32_u24 {v(vXA)}, {XP}, {v(vN)}
    v_lshl_add_u32 {v(vXA)}, {v(vG)}, 4, {v(vXA)}
    s_lshl_b32 {s(sT2)}, {s(sWv)}, 2
    v_add_u32 {v(vT0)}, {s(sT2)}, {v(vG)}
    v_mul_u32_u24 {v(vSA)}, {XP}, {v(vT0)}
    v_lshl_add_u32 {v(vSA)}, {v(vN)}, 3, {v(vSA)}''')
    k.i(f'''s_lshl_b32 {s(sT2)}, {s(sB)}, 11
    s_lshl_b32 {s(sT3)}, {s(sQ)}, 6
    s_add_u32 {s(sT2)}, {s(sT2)}, {s(sT3)}
    v_mul_u32_u24 {v(vTS)}, 57344, {v(vN)}
    v_lshl_add_u32 {v(vTS)}, {v(vG)}, 4, {v(vTS)}
    v_add_u32 {v(vTS)}, {s(sT2)}, {v(vTS)}''')
    k.i(f'''v_and_b32 {v(vT0)}, 3, {v(vL)}
    v_lshlrev_b32 {v(vTR)}, 4, {v(vT0)}
    v_lshl_add_u32 {v(vTR)}, {v(vG)}, 7, {v(vTR)}
    v_bfe_u32 {v(vT0)}, {v(vL)}, 3, 1
    v_lshl_add_u32 {v(vTR)}, {v(vT0)}, 6, {v(vTR)}
    v_bfe_u32 {v(vT0)}, {v(vL)}, 2, 1
    v_lshl_add_u32 {v(vTR)}, {v(vT0)}, 3, {v(vTR)}
    s_mul_i32 {s(sT2)}, {s(sWv)}, 14336
    v_add_u32 {v(vTR)}, {s(sT2)}, {v(vTR)}''')
    k.i(f'''s_lshr_b32 {s(sT2)}, {s(sWv)}, 1
    s_lshl_b32 {s(sT3)}, {s(sT2)}, 10
    s_add_u32 {s(sT4)}, {s(sT3)}, {X1IMG}
    v_add_u32 {v(vB0)}, {s(sT4)}, {v(vL16)}
    s_xor_b32 {s(sT3)}, {s(sT3)}, 1024
    s_add_u32 {s(sT4)}, {s(sT3)}, {X1IMG}
    v_add_u32 {v(vB1)}, {s(sT4)}, {v(vL16)}''')
    k.i(f'''s_lshl_b32 {s(sT3)}, {s(sWv)}, 11
    v_add_u32 {v(vRW)}, {s(sT3)}, {v(vL16)}''')
    k.i(f'''s_lshl_b32 {s(sT3)}, {s(sT2)}, 4
    v_add_u32 {v(vT0)}, {s(sT3)}, {v(vN)}
    v_lshlrev_b32 {v(vSTA)}, 2, {v(vT0)}
    v_mul_u32_u24 {v(vT0)}, 57344, {v(vT0)}
    s_and_b32 {s(sT3)}, {s(sWv)}, 1
    s_lshl_b32 {s(sT3)}, {s(sT3)}, 5
    s_lshl_b32 {s(sT4)}, {s(sJ)}, 6
    s_add_u32 {s(sT3)}, {s(sT3)}, {s(sT4)}
    s_lshl_b32 {s(sT4)}, {s(sT3)}, 1
    v_lshl_add_u32 {v(vT1)}, {v(vG)}, 4, {s(sT4)}
    s_mul_i32 {s(sT4)}, {s(sA)}, 896
    v_add3_u32 {v(vO0)}, {v(vT0)}, {v(vT1)}, {s(sT4)}
    s_sub_u32 {s(sT4)}, 2048, {s(sAM)}
    s_mul_i32 {s(sT4)}, {s(sT4)}, 896
    v_add_u32 {v(vT1)}, {s(sT4)}, {v(vT1)}
    v_sub_u32 {v(vO1)}, {v(vT1)}, {v(vT0)}''')
    k.i(f'''s_lshr_b32 {s(sT4)}, {s(sT3)}, 3
    v_add_u32 {v(vT0)}, {s(sT4)}, {v(vG)}
    v_sub_u32 {v(vT1)}, 55, {v(vT0)}
    s_cmp_lt_u32 {s(sT3)}, 224
    s_cselect_b64 vcc, -1, 0
    s_cselect_b32 {s(sSELE)}, 0x01000c0c, {s(sONES)}
    s_cselect_b32 {s(sT5)}, 0, 512''')
    k.i(f'''s_cmp_lt_u32 {s(sT3)}, 224
    s_mov_b32 {s(sT4)}, 0x05040c0c
    s_cselect_b32 {s(sSELE)}, {s(sSELE)}, {s(sT4)}
    s_add_u32 {s(sSELO)}, {s(sSELE)}, 0x02020000
    v_cndmask_b32 {v(vT0)}, {v(vT1)}, {v(vT0)}, vcc
    v_add_u32 {v(vT1)}, 1, {v(vT1)}
    v_cmp_le_u32 vcc, 28, {v(vT1)}
    v_cndmask_b32 {v(vT1)}, {v(vT1)}, 0, vcc''')
    k.i(f'''s_lshl_b32 {s(sT4)}, {s(sT2)}, 10
    s_add_u32 {s(sT4)}, {s(sT4)}, {X1IMG}
    s_add_u32 {s(sT4)}, {s(sT4)}, {s(sT5)}''')
    for src, dst in ((vT0, vRA0), (vT1, vRA1)):
        k.i(f'''v_lshrrev_b32 {v(dst)}, 1, {v(src)}
        v_lshlrev_b32 {v(dst)}, 12, {v(dst)}
        v_and_b32 {v(src)}, 1, {v(src)}
        v_lshl_add_u32 {v(dst)}, {v(src)}, 3, {v(dst)}
        v_lshl_add_u32 {v(dst)}, {v(vN)}, 4, {v(dst)}
        v_add_u32 {v(dst)}, {s(sT4)}, {v(dst)}''')


def zero_flags(k):
    z = RING
    k.i(f'v_mov_b32 {v(z)}, 0\nv_mov_b32 {v(z + 1)}, 0\nv_mov_b32 {v(z + 2)}, 0\nv_mov_b32 {v(z + 3)}, 0')
    k.i(f'''s_lshl_b32 {s(sT2)}, {s(sWv)}, 12
    s_cmp_eq_u32 s2, 223
    s_cselect_b32 {s(sT2)}, {s(sT2)}, 0x40000000
    v_add_u32 {v(z + 4)}, {s(sT2)}, {v(vL16)}''')
    for i in range(4):
        t = k.vm(f'buffer_store_dwordx4 {v(z, 4)}, {v(z + 4)}, {s(sWS, 4)}, 0 offen offset:{i * 1024} sc1')
    k.i(f'''s_lshl_b32 {s(sT2)}, {s(sQ)}, 2
    s_add_u32 {s(sT2)}, {s(sT2)}, {s(sWv)}
    s_lshl_b32 {s(sT2)}, {s(sT2)}, 10
    s_add_u32 {s(sT2)}, {s(sT2)}, {WS_CH}
    s_cmp_eq_u32 {s(sJ)}, 0
    s_cselect_b32 {s(sT2)}, {s(sT2)}, 0x40000000
    v_add_u32 {v(z + 5)}, {s(sT2)}, {v(vL16)}''')
    k.vm(f'buffer_store_dwordx4 {v(z, 4)}, {v(z + 5)}, {s(sWS, 4)}, 0 offen sc1')
    return t


def set_ready(k, tok):
    k.waitvm(tok)
    k.i(f'''s_lshl_b32 {s(sT2)}, {s(sWv)}, 2
    s_cmp_eq_u32 s2, 223
    s_cselect_b32 {s(sT2)}, {s(sT2)}, 0x40000000
    v_lshlrev_b32 {v(vT0)}, 8, {v(vL)}
    v_add_u32 {v(vT0)}, {s(sT2)}, {v(vT0)}''')
    k.vm(f'buffer_store_dword {v(vONE)}, {v(vT0)}, {s(sDBG, 4)}, 0 offen sc1')


def x_dma(k, layer):
    toks = []
    srdn, base = (sX, 0) if layer == 0 else (sWS, WS_X2)
    k.i(f's_mov_b64 exec, {s(sM57, 2)}')
    k.i(f'''s_lshl_b32 {s(sT2)}, {s(sWv)}, 8
    s_add_u32 {s(sT0)}, {s(sT2)}, {s(sA)}
    s_mul_i32 {s(sT0)}, {s(sT0)}, 896
    s_add_u32 {s(sT1)}, {s(sT2)}, {s(sAM)}
    s_sub_u32 {s(sT1)}, 2048, {s(sT1)}
    s_mul_i32 {s(sT1)}, {s(sT1)}, 896
    s_mul_i32 {s(sT3)}, {s(sWv)}, {4 * XP}''')
    if base:
        k.i(f's_add_u32 {s(sT0)}, {s(sT0)}, {base}\ns_add_u32 {s(sT1)}, {s(sT1)}, {base}')
    for rt in range(4):
        for i in range(4):
            off = ((rt & 1) * 16 + i) * 57344
            if rt < 2:
                k.i(f's_add_u32 {s(sT2)}, {s(sT0)}, {off}')
            else:
                k.i(f's_sub_u32 {s(sT2)}, {s(sT1)}, {off}')
            k.i(f's_add_u32 m0, {s(sT3)}, {XIMG + (rt * 16 + i) * XP}')
            t = k.vm(f'buffer_load_dwordx4 {v(vXD)}, {s(srdn, 4)}, {s(sT2)} offen sc1 lds')
        toks.append(t)
    k.i('s_mov_b64 exec, -1')
    return toks


CV = ACCA


def conv_issue(k):
    vo, la, so = CV, CV + 4, CV + 8
    t0, t1, t2 = CV + 9, CV + 10, CV + 11
    w2, dn = lab('cw2'), lab('cdn')
    k.i(f'''v_lshrrev_b32 {v(t0)}, 5, {v(vL)}
    v_bfe_u32 {v(t1)}, {v(vL)}, 3, 2
    v_and_b32 {v(t2)}, 7, {v(vL)}
    v_lshlrev_b32 {v(t2)}, 4, {v(t2)}''')
    k.i(f'''v_bfe_u32 {v(vT0)}, {v(vL)}, 2, 2
    v_lshlrev_b32 {v(vT0)}, 7, {v(vT0)}
    v_lshl_add_u32 {v(vT0)}, {v(vG)}, 10, {v(vT0)}
    s_lshl_b32 {s(sT5)}, {s(sWv)}, 12
    s_add_u32 {s(sT5)}, {s(sT5)}, {X1IMG}
    v_add_u32 {v(vT0)}, {s(sT5)}, {v(vT0)}
    v_and_b32 {v(vT1)}, 3, {v(vL)}''')
    k.i(f's_cmp_ge_u32 {s(sQ)}, 14\ns_cbranch_scc1 {w2}')
    k.cond_begin()
    k.i(f'''s_lshl_b32 {s(sT2)}, {s(sQ)}, 4
    v_lshl_add_u32 {v(t0)}, {v(t0)}, 3, {v(t1)}
    v_add_u32 {v(t0)}, {s(sT2)}, {v(t0)}
    s_lshl_b32 {s(sT2)}, {s(sB)}, 7
    v_add_u32 {v(t2)}, {s(sT2)}, {v(t2)}
    s_mov_b32 {s(sT3)}, 3584
    v_mad_u32_u24 {v(vo)}, {v(t0)}, {s(sT3)}, {v(t2)}
    v_add_u32 {v(vo + 1)}, {4 * 3584}, {v(vo)}
    v_sub_u32 {v(t1)}, 448, {v(t0)}
    v_mad_u32_u24 {v(vo + 3)}, {v(t1)}, {s(sT3)}, {v(t2)}
    v_subrev_u32 {v(vo + 3)}, {4 * 3584}, {v(vo + 3)}
    v_cmp_eq_u32 vcc, 0, {v(t0)}
    v_mov_b32 {v(t0)}, 224
    v_cndmask_b32 {v(t1)}, {v(t1)}, {v(t0)}, vcc
    v_mad_u32_u24 {v(vo + 2)}, {v(t1)}, {s(sT3)}, {v(t2)}
    v_lshl_add_u32 {v(la)}, {v(vT1)}, 3, {v(vT0)}
    v_add_u32 {v(la + 1)}, 32, {v(la)}
    v_add_u32 {v(la + 2)}, 64, {v(la)}
    v_add_u32 {v(la + 3)}, 96, {v(la)}
    s_mul_i32 {s(sT2)}, {s(sB)}, 14
    s_add_u32 {s(sT2)}, {s(sT2)}, {s(sQ)}
    s_lshl_b32 {s(sT2)}, {s(sT2)}, 12
    s_add_u32 {s(sT2)}, {s(sT2)}, {WS_W1F}
    s_branch {dn}''')
    k.cond_end()
    k.i(f'{w2}:')
    k.cond_begin()
    k.i(f'''s_sub_u32 {s(sT4)}, {s(sQ)}, 14
    s_lshr_b32 {s(sT2)}, {s(sT4)}, 1
    s_lshl_b32 {s(sT2)}, {s(sT2)}, 8
    s_and_b32 {s(sT3)}, {s(sT4)}, 1
    s_lshl_b32 {s(sT3)}, {s(sT3)}, 5
    s_add_u32 {s(sT2)}, {s(sT2)}, {s(sT3)}
    s_lshl_b32 {s(sT3)}, {s(sWv)}, 6
    s_add_u32 {s(sT2)}, {s(sT2)}, {s(sT3)}
    v_lshl_add_u32 {v(t0)}, {v(t0)}, 4, {v(t1)}
    v_add_u32 {v(t0)}, {s(sT2)}, {v(t0)}
    s_lshl_b32 {s(sT2)}, {s(sJ)}, 7
    v_add_u32 {v(t2)}, {s(sT2)}, {v(t2)}
    s_mov_b32 {s(sT3)}, 896
    v_mad_u32_u24 {v(vo)}, {v(t0)}, {s(sT3)}, {v(t2)}
    v_add_u32 {v(vo + 1)}, {4 * 896}, {v(vo)}
    v_add_u32 {v(vo + 2)}, {8 * 896}, {v(vo)}
    v_add_u32 {v(vo + 3)}, {12 * 896}, {v(vo)}
    v_lshl_add_u32 {v(la)}, {v(vT1)}, 4, {v(vT0)}
    s_and_b32 {s(sT3)}, {s(sWv)}, 1
    s_lshl_b32 {s(sT3)}, {s(sT3)}, 6
    v_add_u32 {v(la)}, {s(sT3)}, {v(la)}
    v_add_u32 {v(la + 1)}, 8, {v(la)}
    v_xor_b32 {v(la + 2)}, 64, {v(la)}
    v_add_u32 {v(la + 3)}, 8, {v(la + 2)}
    s_mul_i32 {s(sT2)}, {s(sB)}, 14
    s_add_u32 {s(sT2)}, {s(sT2)}, {s(sT4)}
    s_lshl_b32 {s(sT2)}, {s(sT2)}, 12
    s_add_u32 {s(sT2)}, {s(sT2)}, {WS_W2F}
    s_cmp_ge_u32 {s(sQ)}, 28
    s_cselect_b32 {s(sT2)}, 0x40000000, {s(sT2)}''')
    k.cond_end()
    k.i(f'{dn}:')
    k.i(f'v_add_u32 {v(so)}, {s(sT2)}, {v(vL16)}')
    for i in range(4):
        k.i(f's_add_u32 m0, {s(sT5)}, {i * 1024}')
        t = k.vm(f'buffer_load_dwordx4 {v(vo + i)}, {s(sW, 4)}, 0 offen lds')
    return t


def conv_finish(k, tok):
    la, so, d = CV + 4, CV + 8, CV + 12
    k.waitvm(tok)
    for nt in range(4):
        for hh in range(2):
            k.i(f'ds_read_b64_tr_b16 {v(d + 4 * nt + 2 * hh, 2)}, {v(la + nt)} offset:{hh * 512}')
    for nt in range(4):
        k.vm(f'buffer_store_dwordx4 {v(d + 4 * nt, 4)}, {v(so)}, {s(sWS, 4)}, 0 offen offset:{nt * 1024} sc1')


RD = BIG
MM = BIG + 56
ZA = BIG + 76
OPS = BIG + 92
OPC = BIG + 100


def gen_RD(k, first):
    c0, c1 = RING, RING + 8
    ef, ph, K, df = RING + 16, RING + 17, RING + 18, RING + 19
    k.i(f'''s_lshl_b32 {s(sT2)}, {s(sB)}, 3
    v_and_b32 {v(ef)}, 7, {v(vN)}
    v_add_u32 {v(ef)}, {s(sT2)}, {v(ef)}
    v_cmp_le_u32 vcc, 8, {v(vN)}
    v_cmp_eq_u32 {s(sT4, 2)}, 0, {v(ef)}
    s_and_b64 {s(sT4, 2)}, {s(sT4, 2)}, vcc
    s_andn2_b64 vcc, vcc, {s(sT4, 2)}
    v_mov_b32 {v(K)}, 224
    v_cndmask_b32 {v(ef)}, {v(ef)}, {v(K)}, {s(sT4, 2)}
    v_mov_b32 {v(K)}, {fl(-0.25)}
    v_cndmask_b32 {v(ph)}, 0, {v(K)}, vcc''')
    if first:
        k.i(f'''v_cndmask_b32 {v(vSB)}, 1.0, -1.0, vcc
        v_mul_f32 {v(vFA)}, {s(sF)}, {v(vSB)}''')
    k.i(f'''v_cvt_f32_u32 {v(ef)}, {v(ef)}
    v_mul_f32 {v(ef)}, {fl(1.0 / 448)}, {v(ef)}
    v_lshlrev_b32 {v(df)}, 3, {v(vG)}
    v_cvt_f32_u32 {v(df)}, {v(df)}
    v_fma_f32 {v(ph)}, {v(df)}, {v(ef)}, {v(ph)}
    v_mul_f32 {v(K)}, {fl(32.0)}, {v(ef)}
    v_add_f32 {v(df)}, {v(ph)}, {v(K)}
    v_cos_f32 {v(K)}, {v(K)}''')
    for jj in range(8):
        k.i(f'v_mov_b32 {v(vT0)}, {fl(float(jj))}')
        k.i(f'v_fma_f32 {v(c0 + jj)}, {v(vT0)}, {v(ef)}, {v(ph)}')
        k.i(f'v_fma_f32 {v(c1 + jj)}, {v(vT0)}, {v(ef)}, {v(df)}')
    k.i(f'v_add_f32 {v(K)}, {v(K)}, {v(K)}')
    for jj in range(16):
        k.i(f'v_cos_f32 {v(c0 + jj)}, {v(c0 + jj)}')
    for ks in range(14):
        c = c0 if ks % 2 == 0 else c1
        o = c1 if ks % 2 == 0 else c0
        if ks >= 2:
            for jj in range(8):
                k.i(f'v_fma_f32 {v(c + jj)}, {v(K)}, {v(o + jj)}, -{v(c + jj)}')
        for p in range(4):
            k.i(f'v_cvt_pk_bf16_f32 {v(RD + 4 * ks + p)}, {v(c + 2 * p)}, {v(c + 2 * p + 1)}')
    k.i(f'''v_and_b32 {v(vT0)}, 0xffff0000, {v(RD)}
    v_cmp_eq_u32 vcc, 0, {v(vG)}
    v_cndmask_b32 {v(RD)}, {v(RD)}, {v(vT0)}, vcc''')
    if first:
        k.i(f'v_mov_b32 {v(vRS)}, 0\nv_mov_b32 {v(vT0)}, 0')
        for r in range(0, 56, 2):
            k.i(f'v_dot2c_f32_bf16 {v(vRS)}, {s(sONES)}, {v(RD + r)}')
            k.i(f'v_dot2c_f32_bf16 {v(vT0)}, {s(sONES)}, {v(RD + r + 1)}')
        k.i(f'''v_add_f32 {v(vRS)}, {v(vRS)}, {v(vT0)}
        v_mov_b32 {v(vT0)}, {v(vRS)}
        v_permlane32_swap_b32 {v(vRS)}, {v(vT0)}
        v_add_f32 {v(vRS)}, {v(vRS)}, {v(vT0)}
        v_mov_b32 {v(vT0)}, {v(vRS)}
        v_permlane16_swap_b32 {v(vRS)}, {v(vT0)}
        v_add_f32 {v(vRS)}, {v(vRS)}, {v(vT0)}''')


def gen_M(k):
    nf, j0, dl = RING + 20, RING + 21, RING + 22
    t = RING + 24
    k.i(f'''v_cvt_f32_u32 {v(nf)}, {v(vN)}
    v_mul_f32 {v(nf)}, {fl(1.0 / 32)}, {v(nf)}
    v_lshlrev_b32 {v(j0)}, 2, {v(vG)}
    v_cvt_f32_u32 {v(j0)}, {v(j0)}
    v_mul_f32 {v(j0)}, {v(j0)}, {v(nf)}
    v_mul_f32 {v(dl)}, 0.5, {v(nf)}
    v_mov_b32 {v(vT0)}, {fl(-0.25)}
    s_cmp_eq_u32 {s(sQ)}, 0
    s_cselect_b64 vcc, -1, 0
    v_cndmask_b32 {v(dl)}, {v(vT0)}, {v(dl)}, vcc''')
    for jj in range(8):
        jo = jj if jj < 4 else 12 + jj
        k.i(f'v_mov_b32 {v(vT0)}, {fl(float(jo))}')
        k.i(f'v_fma_f32 {v(t + jj)}, {v(vT0)}, {v(nf)}, {v(j0)}')
        k.i(f'v_add_f32 {v(t + 16 + jj)}, {v(t + jj)}, {v(dl)}')
    for base in (0, 16):
        for jj in range(8):
            k.i(f'v_sin_f32 {v(t + base + 8 + jj)}, -{v(t + base + jj)}')
            k.i(f'v_cos_f32 {v(t + base + jj)}, {v(t + base + jj)}')
    for p in range(16):
        k.i(f'v_cvt_pk_f16_f32 {v(MM + p)}, {v(t + 2 * p)}, {v(t + 2 * p + 1)}')
    for p in range(4):
        k.i(f'v_mov_b32 {v(MM + 16 + p)}, 0xbc003c00')
    for p in range(8):
        k.i(f'v_mov_b32 {v(OPS + p)}, 0')


def gen_G(k):
    af = RING
    tf = RING + 8
    t = RING + 12
    for ks2 in range(2):
        for rho in range(4):
            c = 8 * ks2 + 4 * (rho >> 1) + 32 * (rho & 1)
            k.i(f'v_add_u32 {v(af + 4 * ks2 + rho)}, {c}, {v(vG)}')
    k.i(f'''v_cmp_eq_u32 vcc, 0, {v(vG)}
    v_cndmask_b32 {v(af + 1)}, {v(af + 1)}, 16, vcc''')
    for i in range(8):
        k.i(f'v_cvt_f32_u32 {v(af + i)}, {v(af + i)}')
        k.i(f'v_mul_f32 {v(af + i)}, {fl(1.0 / 2048)}, {v(af + i)}')
    for rt in range(4):
        k.i(f's_add_u32 {s(sT2)}, {s(sA if rt < 2 else sAM)}, {1024 * (rt & 1)}')
        k.i(f'v_lshl_add_u32 {v(tf + rt)}, {v(vN)}, 6, {s(sT2)}')
        k.i(f'v_cvt_f32_u32 {v(tf + rt)}, {v(tf + rt)}')
    for m, src in ((0, sA), (1, sAM)):
        k.i(f'''s_cmp_lt_u32 {s(src)}, 16
        s_mov_b32 {s(sT2 + m)}, 0xbc003c00
        s_cselect_b32 {s(sT2 + m)}, 0x3c003c00, {s(sT2 + m)}''')
    k.i(f'v_mov_b32 {v(vT0)}, {s(sT2)}\nv_mov_b32 {v(vT1)}, {s(sT3)}')
    for rt in range(4):
        for i in range(8):
            k.i(f'v_mul_f32 {v(t + 2 * i)}, {v(tf + rt)}, {v(af + i)}')
        for i in range(8):
            k.i(f'v_sin_f32 {v(t + 2 * i + 1)}, -{v(t + 2 * i)}')
            k.i(f'v_cos_f32 {v(t + 2 * i)}, {v(t + 2 * i)}')
        for i in range(8):
            k.i(f'v_cvt_pk_f16_f32 {v(t + 16 + i)}, {v(t + 2 * i)}, {v(t + 2 * i + 1)}')
        k.i(f'v_cndmask_b32 {v(t + 16)}, {v(t + 16)}, {v(vT0 if rt < 2 else vT1)}, vcc')
        for i in range(8):
            k.i(f'v_accvgpr_write_b32 {a_(aG + 8 * rt + i)}, {v(t + 16 + i)}')


def phase_a(k, layer, xt):
    AF = ACCA
    SD = RING
    S1, S2 = RING + 14, RING + 15
    sw = RING + 16
    k.i(f'''s_lshl_b32 {s(sT2)}, {s(sWv)}, 4
    s_add_u32 {s(sT2)}, {s(sT2)}, {ST_RSTD}
    v_lshlrev_b32 {v(sw)}, 8, {v(vN)}
    v_lshl_add_u32 {v(sw)}, {v(vG)}, 2, {v(sw)}
    v_add_u32 {v(sw)}, {s(sT2)}, {v(sw)}
    v_cmp_eq_u32 {s(sT0, 2)}, 1, {v(vN)}
    v_cmp_eq_u32 {s(sT2, 2)}, 2, {v(vN)}''')
    nf = 0
    for rt in range(4):
        k.waitvm(xt[rt])
        k.barrier()
        st = Stream()
        for i in range(7):
            st.i(f'ds_read_b64 {v(SD + 2 * i, 2)}, {v(vSA)} offset:{rt * 16 * XP + i * 128}')
        st.i(f'v_mov_b32 {v(S1)}, 0\nv_mov_b32 {v(S2)}, 0')
        g = Stream()
        pre = 4
        for ks in range(14 + pre):
            if ks < 14:
                g.i(f'ds_read_b128 {v(AF + 4 * ((nf + ks) % 8), 4)}, {v(vXA)} offset:{rt * 16 * XP + ks * 64}')
            if ks >= pre:
                q = ks - pre
                c = '0' if q == 0 else v(ZA + 4 * rt, 4)
                g.i(f'v_mfma_f32_16x16x32_bf16 {v(ZA + 4 * rt, 4)}, {v(AF + 4 * ((nf + q) % 8), 4)}, {v(RD + 4 * q, 4)}, {c}')
        nf += 14
        f = Stream()
        for i in range(14):
            f.i(f'v_dot2c_f32_bf16 {v(S1)}, {s(sONES)}, {v(SD + i)}')
            f.i(f'v_dot2c_f32_bf16 {v(S2)}, {v(SD + i)}, {v(SD + i)}')
        for sh in (8, 4, 2, 1):
            f.i(f'v_add_f32_dpp {v(S1)}, {v(S1)}, {v(S1)} row_ror:{sh} row_mask:0xf bank_mask:0xf')
            f.i(f'v_add_f32_dpp {v(S2)}, {v(S2)}, {v(S2)} row_ror:{sh} row_mask:0xf bank_mask:0xf')
        f.i(f'''v_mul_f32 {v(S1)}, {fl(1.0 / 448)}, {v(S1)}
        v_mul_f32 {v(S2)}, {fl(1.0 / 448)}, {v(S2)}
        v_fma_f32 {v(S2)}, -{v(S1)}, {v(S1)}, {v(S2)}
        v_max_f32 {v(S2)}, 0, {v(S2)}
        v_add_f32 {v(S2)}, {fl(1e-5)}, {v(S2)}
        v_rsq_f32 {v(S2)}, {v(S2)}
        v_mul_f32 {v(vT0)}, {v(S1)}, {v(S2)}
        v_cndmask_b32 {v(S2)}, {v(S2)}, {v(vT0)}, {s(sT0, 2)}
        v_cndmask_b32 {v(S2)}, {v(S2)}, {v(S1)}, {s(sT2, 2)}''')
        k.extend(st)
        k.extend(weave(g, f))
        k.i(f's_mov_b64 exec, {s(sMC3, 2)}')
        k.i(f'ds_write_b32 {v(sw)}, {v(S2)} offset:{rt * 64}')
        k.i('s_mov_b64 exec, -1')
    k.barrier()
    stamp(k, f'L{layer} gemmA done')
    RS, MR = ACCA, ACCA + 16
    k.i(f'v_lshlrev_b32 {v(vT0)}, 4, {v(vG)}\nv_add_u32 {v(vT0)}, {ST_RSTD}, {v(vT0)}')
    for rt in (0, 2, 1, 3):
        k.i(f'ds_read_b128 {v(RS + 4 * rt, 4)}, {v(vT0)} offset:{rt * 64}')
        k.i(f'ds_read_b128 {v(MR + 4 * rt, 4)}, {v(vT0)} offset:{256 + rt * 64}')
    OA, OB = ACCB, ACCB + 8
    for h in range(2):
        for rt in (h, h + 2):
            for r in range(4):
                i = 4 * rt + r
                k.i(f'v_mul_f32 {v(ZA + i)}, {v(ZA + i)}, {v(RS + i)}')
            for r in range(4):
                i = 4 * rt + r
                k.i(f'v_fma_f32 {v(ZA + i)}, -{v(MR + i)}, {v(vRS)}, {v(ZA + i)}')
        for r in range(4):
            i = 4 * h + r
            k.i(f'v_fma_f32 {v(OA + i)}, {v(ZA + 8 + i)}, {v(vFA)}, {v(ZA + i)}')
            k.i(f'v_mul_f32 {v(OB + i)}, {s(sF)}, {v(ZA + i)}')
        for r in range(4):
            i = 4 * h + r
            k.i(f'v_fmac_f32 {v(OB + i)}, {v(ZA + 8 + i)}, {v(vSB)}')
    for p in range(8):
        k.i(f'v_cvt_pk_f16_f32 {v(OPC + p)}, {v(OA + 2 * p)}, {v(OA + 2 * p + 1)}')
    k.i(f's_mov_b64 exec, {s(sMSP, 2)}')
    for p in range(8):
        k.i(f'v_xor_b32 {v(OPS + p)}, 0x80008000, {v(OPC + p)}')
    for p in range(8):
        k.i(f'v_mov_b32_dpp {v(OPS + p)}, {v(OPC + p)} row_ror:8 row_mask:0xf bank_mask:0x3')
    for p in range(8):
        k.i(f'v_mov_b32_dpp {v(OPC + p)}, {v(OPC + p)} row_ror:8 row_mask:0xf bank_mask:0xc')
    k.i('s_mov_b64 exec, -1')
    TA, TB, XA, XB = ZA, ZA + 4, ZA + 8, ZA + 12
    k.i(f'''v_mfma_f32_16x16x32_f16 {v(TA, 4)}, {v(OPS, 4)}, {v(MM + 4, 4)}, 0
    v_mfma_f32_16x16x32_f16 {v(TB, 4)}, {v(OPS + 4, 4)}, {v(MM + 12, 4)}, 0
    v_mfma_f32_16x16x32_f16 {v(TA, 4)}, {v(OPC, 4)}, {v(MM, 4)}, {v(TA, 4)}
    v_mfma_f32_16x16x32_f16 {v(TB, 4)}, {v(OPC + 4, 4)}, {v(MM + 8, 4)}, {v(TB, 4)}
    v_mfma_f32_16x16x32_f16 {v(XA, 4)}, {v(OPC, 4)}, {v(MM + 16, 4)}, 0
    v_mfma_f32_16x16x32_f16 {v(XB, 4)}, {v(OPS + 4, 4)}, {v(MM + 16, 4)}, 0''')
    P = ACCB + 16
    k.i(f's_mov_b32 {s(sT0)}, {WS_T + layer * T_SZ}\ns_mov_b32 {s(sT1)}, {WS_T + layer * T_SZ + 16 * 57344}')
    for p in range(4):
        k.i(f'v_cvt_pk_f16_f32 {v(P + p)}, {v(TA + 2 * p)}, {v(TA + 2 * p + 1)}')
    k.vm(f'buffer_store_dwordx4 {v(P, 4)}, {v(vTS)}, {s(sWS, 4)}, {s(sT0)} offen sc1')
    for p in range(4):
        k.i(f'v_cvt_pk_f16_f32 {v(P + 4 + p)}, {v(XA + 2 * p)}, {v(XA + 2 * p + 1)}')
    k.i(f's_mov_b64 exec, {s(sMN0, 2)}')
    t = k.vm(f'buffer_store_dwordx4 {v(P + 4, 4)}, {v(vTS)}, {s(sWS, 4)}, {s(sT1)} offen sc1')
    k.i('s_mov_b64 exec, -1')
    return t


SACC = BIG
MN = ACCB + 24


def acc_init(k):
    SEL = RING
    AD, AM_, STP = RING + 4, RING + 5, RING + 6
    MNE = RING + 8
    D = RING + 12
    st = Stream()
    st.i(f'v_lshlrev_b32 {v(vT0)}, 2, {v(vN)}\nv_add_u32 {v(vT0)}, {ST_MEAN}, {v(vT0)}')
    for rt in range(4):
        st.i(f'ds_read_b32 {v(MNE + rt)}, {v(vT0)} offset:{rt * 64}')
    st.i(f'v_cmp_gt_u32 vcc, 2, {v(vG)}')
    e = [0x01000c0c, 0x03020c0c, 0x05040c0c, 0x07060c0c]
    for i in range(4):
        st.i(f'v_mov_b32 {v(vT0)}, {e[i]}\nv_mov_b32 {v(vT1)}, {e[3 - i]}')
        st.i(f'v_cndmask_b32 {v(SEL + i)}, {v(vT1)}, {v(vT0)}, vcc')
    st.i(f'''v_mov_b32 {v(vT0)}, -16
    v_cndmask_b32 {v(STP)}, {v(vT0)}, 16, vcc''')

    def setb(sreg):
        st.i(f'''v_and_b32 {v(vT0)}, 1, {v(vG)}
        v_lshl_add_u32 {v(vT0)}, {v(vT0)}, 3, {s(sreg)}
        v_sub_u32 {v(vT1)}, 890, {v(vT0)}
        v_cndmask_b32 {v(AD)}, {v(vT1)}, {v(vT0)}, vcc
        v_cndmask_b32 {v(AM_)}, {v(vT0)}, {v(vT1)}, vcc
        v_mul_u32_u24 {v(vT0)}, {XP}, {v(vN)}
        v_add_u32 {v(AD)}, {v(AD)}, {v(vT0)}
        v_add_u32 {v(AM_)}, {v(AM_)}, {v(vT0)}''')
    st.i(f's_mul_i32 {s(sT2)}, {s(sWv)}, 96')
    setb(sT2)
    reads, procs = [], []
    n = 0
    for beta in range(7):
        r = Stream()
        if 0 < beta < 6:
            r.i(f'v_add_u32 {v(AD)}, {v(AD)}, {v(STP)}\nv_sub_u32 {v(AM_)}, {v(AM_)}, {v(STP)}')
        if beta == 6:
            save = st
            st = r
            r.i(f's_lshl_b32 {s(sT2)}, {s(sWv)}, 4\ns_add_u32 {s(sT2)}, {s(sT2)}, {24 * 16}')
            r.i(f'v_cmp_gt_u32 vcc, 2, {v(vG)}')
            setb(sT2)
            st = save
        p = Stream()
        for rt in range(4):
            d = D + 2 * (n % 16)
            n += 1
            r.i(f'ds_read_b64 {v(d, 2)}, {v(AD if rt < 2 else AM_)} offset:{XIMG + rt * 16 * XP}')
            ac = SACC + (beta * 4 + rt) * 4
            for i in range(4):
                p.i(f'v_perm_b32 {v(ac + i)}, {v(d + 1)}, {v(d)}, {v(SEL + (i if rt < 2 else 3 - i))}')
            if beta == 0:
                p.i(f'v_mov_b32 {v(MN + rt)}, {v(ac)}')
            for i in range(4):
                p.i(f'v_sub_f32 {v(ac + i)}, {v(ac + i)}, {v(MNE + rt)}')
        reads.append(r)
        procs.append(p)
    first = st
    first.extend(reads[0])
    first.extend(reads[1])
    for b in range(3):
        first.extend(reads[b + 2])
        first.extend(procs[b])
    second = Stream()
    for b in range(3, 7):
        if b + 2 < 7:
            second.extend(reads[b + 2])
        second.extend(procs[b])
    return first, second


def sync_T(k, layer, tok, part1, part2):
    stamp(k, f'L{layer} T issued')
    k.extend(part1)
    k.waitvm(tok)
    k.barrier()
    stamp(k, f'L{layer} T acked')
    sk = lab('t0')
    k.i(f's_cmp_lg_u32 {s(sWv)}, 0\ns_cbranch_scc1 {sk}')
    k.cond_begin()
    if layer == 0:
        k.i(f'v_and_b32 {v(vT0)}, 3, {v(vL)}\nv_lshlrev_b32 {v(vT0)}, 2, {v(vT0)}')
        spin_loop(k, f'buffer_load_dword {v(vPOLL)}, {v(vT0)}, {s(sDBG, 4)}, 0 offen sc1', 1, False)
    k.i(f'''s_lshl_b32 {s(sT2)}, {s(sXCD)}, 7
    s_add_u32 {s(sT2)}, {s(sT2)}, {WS_CT + layer * 8192}
    v_lshl_add_u32 {v(vT0)}, {v(vL)}, 10, {s(sT2)}
    s_mov_b64 exec, 0xff''')
    k.vm(f'buffer_atomic_add {v(vONE)}, {v(vT0)}, {s(sWS, 4)}, 0 offen sc1')
    k.i('s_mov_b64 exec, -1')
    k.cond_end()
    k.i(f'{sk}:')
    k.extend(part2)
    sk = lab('t1')
    k.i(f's_cmp_lg_u32 {s(sWv)}, 0\ns_cbranch_scc1 {sk}')
    k.cond_begin()
    k.i(f'''s_lshl_b32 {s(sT2)}, {s(sXCD)}, 10
    s_add_u32 {s(sT2)}, {s(sT2)}, {WS_CT + layer * 8192}
    v_and_b32 {v(vT0)}, 7, {v(vL)}
    v_lshl_add_u32 {v(vT0)}, {v(vT0)}, 7, {s(sT2)}''')
    spin_loop(k, f'buffer_load_dword {v(vPOLL)}, {v(vT0)}, {s(sWS, 4)}, 0 offen sc1', 28, False)
    k.cond_end()
    k.i(f'{sk}:')
    k.barrier()
    stamp(k, f'L{layer} T seen')


def w1_loads(ks_list):
    st = Stream()
    for ks in ks_list:
        g = Stream()
        g.i(f's_add_u32 {s(sT5)}, {s(sW1B)}, {ks * 4096}')
        g.vm(f'buffer_load_dwordx4 {a_(16 * ks, 4)}, {v(vL16)}, {s(sWS, 4)}, {s(sT5)} offen')
        st.group(g)
        for ft in range(1, 4):
            st.vm(f'buffer_load_dwordx4 {a_(16 * ks + 4 * ft, 4)}, {v(vL16)}, {s(sWS, 4)}, {s(sT5)} offen offset:{ft * 1024}')
    return st


def w2reg(kk, nt):
    return v(BIG + 16 * kk + 4 * nt, 4) if kk < 7 else a_(16 * (kk - 7) + 4 * nt, 4)


def w2_loads(kk):
    st = Stream()
    if 'now2' in X:
        return st
    g = Stream()
    g.i(f's_lshl1_add_u32 {s(sT5)}, {s(sROT + (kk >> 1))}, {s(sW2B)}')
    if kk & 1:
        g.i(f's_add_u32 {s(sT5)}, {s(sT5)}, 4096')
    g.vm(f'buffer_load_dwordx4 {w2reg(kk, 0)}, {v(vL16)}, {s(sWS, 4)}, {s(sT5)} offen')
    st.group(g)
    for nt in range(1, 4):
        st.vm(f'buffer_load_dwordx4 {w2reg(kk, nt)}, {v(vL16)}, {s(sWS, 4)}, {s(sT5)} offen offset:{nt * 1024}')
    return st


PK = RING


def stage2(k, layer):
    AF = ACCA
    WD, WM, WD1, WM1 = ACCB, ACCB + 1, ACCB + 2, ACCB + 3
    k.i(f'''s_mul_i32 {s(sT0)}, {s(sK)}, 57344
    s_add_u32 {s(sT0)}, {s(sT0)}, {WS_T + layer * T_SZ}
    s_lshl_b32 {s(sT1)}, {s(sWv)}, 11
    s_add_u32 {s(sT1)}, {s(sT1)}, {s(sT0)}
    s_add_u32 {s(sT1)}, {s(sT1)}, {24 * 2048}
    s_mul_i32 {s(sT2)}, {s(sWv)}, 12288
    s_add_u32 {s(sT0)}, {s(sT0)}, {s(sT2)}
    s_mul_i32 {s(sT3)}, {s(sWv)}, 14336''')
    toks = []
    for p in range(4):
        k.i(f's_add_u32 m0, {s(sT3)}, {TIMG + p * 4096}')
        if 0 < p < 3:
            k.i(f's_add_u32 {s(sT0)}, {s(sT0)}, 4096')
        for i in range(4 if p < 3 else 2):
            t = k.vm(f'buffer_load_dwordx4 {v(vL16)}, {s(sWS, 4)}, {s(sT0 if p < 3 else sT1)} offen offset:{i * 1024} sc1 lds')
        toks.append(t)
    k.i(f'''s_add_u32 {s(sT2)}, {s(sT2)}, {X1IMG}
    v_add_u32 {v(WD)}, {s(sT2)}, {v(vL16)}
    v_xor_b32 {v(vT0)}, 512, {v(vL16)}
    v_add_u32 {v(WM)}, {s(sT2)}, {v(vT0)}
    s_lshr_b32 {s(sT2)}, {s(sWv)}, 1
    s_lshl_b32 {s(sT2)}, {s(sT2)}, 12
    s_and_b32 {s(sT3)}, {s(sWv)}, 1
    s_lshl_b32 {s(sT3)}, {s(sT3)}, 3
    s_add_u32 {s(sT2)}, {s(sT2)}, {s(sT3)}
    s_add_u32 {s(sT2)}, {s(sT2)}, {X1IMG + 12 * 4096}
    v_add_u32 {v(WD1)}, {s(sT2)}, {v(vL16)}
    v_add_u32 {v(WM1)}, {s(sT2)}, {v(vT0)}''')
    w1 = w1_loads(range(14) if layer == 0 else range(7))
    nw = len(w1)
    cut = [0, nw * 4 // 7, nw * 5 // 7, nw * 6 // 7, nw]
    k.extend(w1[cut[0]:cut[1]])

    def reads(p):
        r = Stream()
        r.waitvm(toks[p])
        for bl in range(2 if p < 3 else 1):
            for ks2 in range(2):
                for h in range(2):
                    d = AF + 16 * (p & 1) + 8 * bl + 4 * ks2 + 2 * h
                    r.i(f'ds_read_b64_tr_b16 {v(d, 2)}, {v(vTR)} offset:{TIMG + p * 4096 + bl * 2048 + ks2 * 1024 + h * 512}')
        return r

    def post(p, rt):
        f = Stream()
        nb = 2 if p < 3 else 1
        pk = PK + 16 * p + 2 * nb * rt
        for bl in range(nb):
            ac = SACC + ((2 * p + bl) * 4 + rt) * 4
            f.i(f'v_cvt_pk_bf16_f32 {v(pk + 2 * bl)}, {v(ac)}, {v(ac + 1)}')
            f.i(f'v_cvt_pk_bf16_f32 {v(pk + 2 * bl + 1)}, {v(ac + 2)}, {v(ac + 3)}')
        if p < 3:
            f.i(f'ds_write_b128 {v(WD if rt < 2 else WM)}, {v(pk, 4)} offset:{p * 4096 + rt * 1024}')
        else:
            f.i(f'ds_write_b64 {v(WD1 if rt < 2 else WM1)}, {v(pk, 2)} offset:{rt * 1024}')
        return f

    k.extend(reads(0))
    pend = Stream()
    for p in range(4):
        nb = 2 if p < 3 else 1
        for rt in range(4):
            if p == 0 and rt == 2:
                sk = lab('fx')
                k.i(f's_cmp_lg_u32 {s(sWv)}, 0\ns_cbranch_scc1 {sk}')
                k.cond_begin()
                k.i(f's_mov_b32 exec_lo, 0x01010101\ns_mov_b32 exec_hi, 0x01010101')
                for r in range(8):
                    k.i(f'v_mov_b32_dpp {v(AF + r)}, {v(AF + r)} row_ror:8 row_mask:0xf bank_mask:0xf')
                k.i('s_mov_b64 exec, -1')
                k.cond_end()
                k.i(f'{sk}:')
            g = Stream()
            for ks2 in range(2):
                for bl in range(nb):
                    ac = SACC + ((2 * p + bl) * 4 + rt) * 4
                    g.i(f'v_mfma_f32_16x16x32_f16 {v(ac, 4)}, {v(AF + 16 * (p & 1) + 8 * bl + 4 * ks2, 4)}, {a_(aG + 8 * rt + 4 * ks2, 4)}, {v(ac, 4)}')
            k.extend(weave(g, pend))
            pend = post(p, rt)
            if rt == 1 and p < 3:
                k.extend(reads(p + 1))
        if p < 3:
            k.extend(w1[cut[p + 1]:cut[p + 2]])
    k.extend(pend)
    sk = lab('m1')
    k.i(f's_cmp_lg_u32 {s(sWv)}, 0\ns_cbranch_scc1 {sk}')
    k.cond_begin()
    for rt in range(4):
        k.i(f'v_sub_f32 {v(MN + rt)}, {v(MN + rt)}, {v(SACC + 4 * rt)}')
    k.i(f'v_lshlrev_b32 {v(vT0)}, 2, {v(vN)}\nv_add_u32 {v(vT0)}, {ST_M1}, {v(vT0)}')
    k.i('s_mov_b64 exec, 0xffff')
    k.i(f'ds_write_b32 {v(vT0)}, {v(MN)}\nds_write_b32 {v(vT0)}, {v(MN + 1)} offset:64')
    k.i('s_mov_b32 exec_lo, 0\ns_mov_b32 exec_hi, 0xffff')
    k.i(f'ds_write_b32 {v(vT0)}, {v(MN + 2)} offset:128\nds_write_b32 {v(vT0)}, {v(MN + 3)} offset:192')
    k.i('s_mov_b64 exec, -1')
    k.drain_lgkm()
    k.cond_end()
    k.i(f'{sk}:')
    k.barrier()
    stamp(k, f'L{layer} stage2 done')


def ssq_stream():
    f = Stream()
    S = ACCB + 24
    for rt in range(4):
        f.i(f'v_mov_b32 {v(S + rt)}, 0')
    for p in range(4):
        n = 4 if p < 3 else 2
        for i in range(n):
            for rt in range(4):
                r = PK + 16 * p + n * rt + i
                f.i(f'v_dot2c_f32_bf16 {v(S + rt)}, {v(r)}, {v(r)}')
    f.i(f'''v_permlane32_swap_b32 {v(S)}, {v(S + 1)}
    v_permlane32_swap_b32 {v(S + 2)}, {v(S + 3)}
    v_add_f32 {v(S)}, {v(S)}, {v(S + 1)}
    v_add_f32 {v(S + 2)}, {v(S + 2)}, {v(S + 3)}''')
    f.i(f'''v_and_b32 {v(S + 1)}, 1, {v(vG)}
    v_lshlrev_b32 {v(S + 1)}, 9, {v(S + 1)}
    v_lshrrev_b32 {v(S + 3)}, 1, {v(vG)}
    v_lshl_add_u32 {v(S + 1)}, {v(S + 3)}, 8, {v(S + 1)}
    v_permlane16_swap_b32 {v(S)}, {v(S + 2)}
    v_lshl_add_u32 {v(S + 1)}, {v(vN)}, 4, {v(S + 1)}''')
    g = Stream()
    g.i(f'''s_lshl_b32 {s(sT4)}, {s(sWv)}, 2
    s_add_u32 {s(sT4)}, {s(sT4)}, {ST_SSQ}
    v_add_u32 {v(S + 1)}, {s(sT4)}, {v(S + 1)}''')
    f.group(g)
    f.i(f'v_add_f32 {v(S)}, {v(S)}, {v(S + 2)}')
    f.i(f'ds_write_b32 {v(S + 1)}, {v(S)}')
    return f


def ffn1_main(hf, BF):
    acc = ACCA if hf == 0 else ACCB
    g = Stream()

    def rd(ks, rho):
        g.i(f'ds_read_b128 {v(BF + 8 * (ks % 3) + 4 * rho, 4)}, {v(vB0 + rho)} offset:{ks * 4096 + hf * 2048}')
    rd(0, 0); rd(0, 1); rd(1, 0); rd(1, 1)
    for ks in range(14):
        for rho in range(2):
            for ft in range(4):
                c = acc + 8 * ft + 4 * rho
                src = '0' if ks == 0 else v(c, 4)
                g.i(f'v_mfma_f32_16x16x32_bf16 {v(c, 4)}, {a_(16 * ks + 4 * ft, 4)}, {v(BF + 8 * (ks % 3) + 4 * rho, 4)}, {src}')
                if ft == 0 and ks + 2 < 14:
                    rd(ks + 2, rho)
    return g


HOWN = [RING + 24, RING + 40]


def ffn1_epi(hf, layer):
    acc = ACCA if hf == 0 else ACCB
    f = Stream()
    tok = None
    for u in range(2):
        for rho in range(2):
            h = HOWN[hf] + 8 * u + 4 * rho
            for t in range(2):
                c = acc + 8 * (2 * u + t) + 4 * rho
                f.i(f'v_cvt_pk_bf16_f32 {v(h + 2 * t)}, {v(c)}, {v(c + 1)}')
                f.i(f'v_cvt_pk_bf16_f32 {v(h + 2 * t + 1)}, {v(c + 2)}, {v(c + 3)}')
            for r in range(4):
                f.i(f'v_pk_max_i16 {v(h + r)}, {v(h + r)}, 0')
            g = Stream()
            g.i(f's_add_u32 {s(sT4)}, {s(sHB)}, {s(sROT)}')
            if hf or layer:
                g.i(f's_add_u32 {s(sT4)}, {s(sT4)}, {hf * 114688 + layer * H_SZ}')
            tok = g.vm(f'buffer_store_dwordx4 {v(h, 4)}, {v(vL16)}, {s(sWS, 4)}, {s(sT4)} offen offset:{(2 * u + rho) * 1024} sc1')
            f.group(g)
    return f, tok


def h_signal(tok, hf, layer):
    g = Stream()
    g.waitvm(tok)
    g.i(f'''s_lshl_b32 {s(sT4)}, {s(sWv)}, 7
    s_add_u32 {s(sT4)}, {s(sT4)}, {s(sCH)}
    s_mov_b64 exec, 1''')
    g.vm(f'buffer_atomic_add {v(vONE)}, off, {s(sWS, 4)}, {s(sT4)} offset:{(layer * 8 + hf * 4) * 128} sc1')
    g.i('s_mov_b64 exec, -1')
    return g


def h_poll_text(hf, layer):
    return f'buffer_load_dword {v(vPOLL)}, off, {s(sWS, 4)}, {s(sT3)} offset:{(layer * 8 + hf * 4) * 128} sc1'


def h_poll_issue(hf, layer):
    g = Stream()
    g.i(f's_lshl_b32 {s(sT3)}, {s(sWv)}, 7\ns_add_u32 {s(sT3)}, {s(sT3)}, {s(sCH)}')
    g.vm(h_poll_text(hf, layer))
    return g


def ffn2_mfma(g, hf, kk, rho, breg):
    acc = ACCA if hf == 0 else ACCB
    for nt in range(4):
        c = acc + 16 * rho + 4 * nt
        src = '0' if kk == 0 else v(c, 4)
        g.i(f'v_mfma_f32_16x16x32_bf16 {v(c, 4)}, {w2reg(kk, nt)}, {breg}, {src}')


NRING = 14


def red_write(hf):
    acc = ACCA if hf == 0 else ACCB
    red = REDA if hf == 0 else REDB
    f = Stream()
    for sg in range(1, 4):
        f.i(f'v_xor_b32 {v(vT0)}, {sg << 11}, {v(vRW)}')
        f.i(f'v_add_u32 {v(vT0)}, {red + (sg - 1) * 8192}, {v(vT0)}')
        for u in range(2):
            f.i(f'ds_write_b128 {v(vT0)}, {v(acc + 8 * sg + 4 * u, 4)} offset:{u * 1024}')
    return f


def red_finish(hf, layer, tmp):
    acc = ACCA if hf == 0 else ACCB
    red = REDA if hf == 0 else REDB
    f = Stream()
    R, EX, M1, SQ = tmp, tmp + 4, tmp + 5, tmp + 8
    f.i(f'v_add_u32 {v(vT1)}, {red}, {v(vRW)}')
    for sg in range(1, 4):
        for u in range(2):
            f.i(f'ds_read_b128 {v(acc + 8 * sg + 4 * u, 4)}, {v(vT1)} offset:{(sg - 1) * 8192 + u * 1024}')
    f.i(f'v_lshlrev_b32 {v(vT1)}, 2, {v(vSTA)}')
    f.i(f'v_add_u32 {v(vT1)}, {ST_SSQ + hf * 512}, {v(vT1)}')
    f.i(f'ds_read_b128 {v(SQ, 4)}, {v(vT1)}')
    f.i(f'v_add_u32 {v(vT1)}, {ST_M1 + hf * 128}, {v(vSTA)}')
    f.i(f'ds_read_b32 {v(M1)}, {v(vT1)}')
    f.i(f'ds_read_b64 {v(R, 2)}, {v(vRA0)} offset:{hf * 2048}')
    f.i(f'ds_read_b64 {v(R + 2, 2)}, {v(vRA0)} offset:{hf * 2048 + 256}')
    f.i(f'ds_read_b32 {v(EX)}, {v(vRA1)} offset:{hf * 2048}')
    for r in range(8):
        f.i(f'v_add_f32 {v(acc + r)}, {v(acc + r)}, {v(acc + 8 + r)}')
    for r in range(8):
        f.i(f'v_add_f32 {v(acc + 16 + r)}, {v(acc + 16 + r)}, {v(acc + 24 + r)}')
    f.i(f'''v_add_f32 {v(SQ)}, {v(SQ)}, {v(SQ + 1)}
    v_add_f32 {v(SQ + 2)}, {v(SQ + 2)}, {v(SQ + 3)}
    v_add_f32 {v(SQ)}, {v(SQ)}, {v(SQ + 2)}
    v_mov_b32 {v(SQ + 1)}, {fl(1e-5)}
    v_fmac_f32 {v(SQ + 1)}, {fl(1.0 / 448)}, {v(SQ)}
    v_rsq_f32 {v(SQ)}, {v(SQ + 1)}''')
    for r in range(8):
        f.i(f'v_add_f32 {v(acc + r)}, {v(acc + r)}, {v(acc + 16 + r)}')
    for i in range(8):
        up = EX if i == 0 else R + ((8 - i) >> 1)
        f.i(f'v_perm_b32 {v(acc + 8 + i)}, {v(up)}, {v(R + (i >> 1))}, {s(sSELO if i & 1 else sSELE)}')
    for i in range(8):
        f.i(f'v_add_f32 {v(acc + 8 + i)}, {v(acc + 8 + i)}, {v(M1)}')
    for i in range(8):
        f.i(f'v_fmac_f32 {v(acc + 8 + i)}, {v(acc + i)}, {v(SQ)}')
    for p in range(4):
        f.i(f'v_cvt_pk_bf16_f32 {v(acc + 16 + p)}, {v(acc + 8 + 2 * p)}, {v(acc + 9 + 2 * p)}')
    g = Stream()
    if layer == 0:
        g.i(f's_mov_b32 {s(sT4)}, {WS_X2}')
        tok = g.vm(f'buffer_store_dwordx4 {v(acc + 16, 4)}, {v(vO0 + hf)}, {s(sWS, 4)}, {s(sT4)} offen sc1')
    else:
        tok = g.vm(f'buffer_store_dwordx4 {v(acc + 16, 4)}, {v(vO0 + hf)}, {s(sOUT, 4)}, 0 offen sc1')
    f.group(g)
    return f, tok


def ffn(k, layer):
    m = ffn1_main(0, ACCB)
    ld = Stream()
    for kk in range(7):
        ld.extend(w2_loads(kk))
    m = weave(m, ld, 0, 108)
    if 'nossq' not in X:
        m = weave(m, ssq_stream(), 4, 100)
    k.extend(m)
    stamp(k, f'L{layer} ffn1A done')
    m = ffn1_main(1, RING)
    epi, tokA = ffn1_epi(0, layer)
    out = m
    for kk in range(7, 14):
        lo = max(8 * (kk - 7 + 1), 26 + 11 * (kk - 7))
        out = weave(out, w2_loads(kk), lo, lo + 10)
    out = weave(out, epi, 1, 25)
    sig = Stream()
    sig.group(h_signal(tokA, 0, layer))
    out = weave(out, sig, 76, 77)
    k.extend(out)
    stamp(k, f'L{layer} ffn1 done')
    k.extend(h_poll_issue(0, layer))
    g = Stream()
    for kk in range(2):
        for rho in range(2):
            ffn2_mfma(g, 0, kk, rho, v(HOWN[0] + 8 * kk + 4 * rho, 4))
    epi, tokB = ffn1_epi(1, layer)
    k.extend(weave(g, epi, 1, 16))
    g = Stream()
    for kk in range(2):
        for rho in range(2):
            ffn2_mfma(g, 1, kk, rho, v(HOWN[1] + 8 * kk + 4 * rho, 4))
    k.extend(g)
    spin_loop(k, h_poll_text(0, layer), 7, True)
    stamp(k, f'L{layer} hA seen')

    def hload(st, n):
        hf, kk, rho = n // 24, 2 + (n % 24) // 2, n & 1
        if n % 4 == 0:
            st.i(f's_add_u32 {s(sT5)}, {s(sHB)}, {s(sROT + (kk >> 1))}')
            if hf or layer:
                st.i(f's_add_u32 {s(sT5)}, {s(sT5)}, {hf * 114688 + layer * H_SZ}')
        st.vm(f'buffer_load_dwordx4 {v(RING + 4 * (n % NRING), 4)}, {v(vL16)}, {s(sWS, 4)}, {s(sT5)} offen offset:{(n % 4) * 1024} sc1')
    for n in range(NRING):
        hload(k, n)
    k.extend(h_signal(tokB, 1, layer))
    toks = []
    mainB = Stream()
    for n in range(48):
        hf, kk, rho = n // 24, 2 + (n % 24) // 2, n & 1
        st = k if hf == 0 else mainB
        ffn2_mfma(st, hf, kk, rho, v(RING + 4 * (n % NRING), 4))
        nn = n + NRING
        if n == 6:
            k.extend(h_poll_issue(1, layer))
        if hf == 0 and nn >= 24:
            if n == 19:
                spin_loop(k, h_poll_text(1, layer), 7, True)
                for x in range(24, 20 + NRING):
                    hload(k, x)
            elif n > 19:
                hload(k, nn)
        elif nn < 48:
            hload(st, nn)
    stamp(k, f'L{layer} ffn2A done')
    fin, tok0 = red_finish(0, layer, BIG)
    bar = Stream()
    b = Stream()
    b.barrier()
    bar.group(b)
    mainB = weave(mainB, fin, 30, 70)
    mainB = weave(mainB, bar, 26, 27)
    mainB = weave(mainB, red_write(0), 2, 14)
    k.extend(mainB)
    stamp(k, f'L{layer} ffn2 done')
    k.extend(red_write(1))
    k.barrier()
    fin, tok1 = red_finish(1, layer, BIG)
    k.extend(fin)
    return tok1


def sync_X(k, tok, part1, part2):
    k.extend(part1)
    k.waitvm(tok)
    k.barrier()
    stamp(k, 'x2 acked')
    sk = lab('x0')
    k.i(f's_cmp_lg_u32 {s(sWv)}, 0\ns_cbranch_scc1 {sk}')
    k.cond_begin()
    k.i('s_mov_b64 exec, 1')
    k.vm(f'buffer_atomic_add {v(vONE)}, off, {s(sWS, 4)}, {s(sCH)} offset:{16 * 128} sc1')
    k.i('s_mov_b64 exec, -1')
    k.cond_end()
    k.i(f'{sk}:')
    k.extend(part2)
    sk = lab('x1')
    k.i(f's_cmp_lg_u32 {s(sWv)}, 0\ns_cbranch_scc1 {sk}')
    k.cond_begin()
    spin_loop(k, f'buffer_load_dword {v(vPOLL)}, off, {s(sWS, 4)}, {s(sCH)} offset:{16 * 128} sc1', 7, False)
    k.cond_end()
    k.i(f'{sk}:')
    k.barrier()
    stamp(k, 'x2 seen')


def dump_stamps(k):
    if not PROF:
        return
    k.drain_vm()
    stamp(k, 'end')
    n = nstamp[0]
    k.i(f'v_mov_b32 {v(vT0)}, 0')
    for i in range(n):
        k.i(f'v_writelane_b32 {v(vT0)}, {s(sSTAMP + i)}, {i}')
    k.i(f'''s_lshl_b32 {s(sT2)}, s2, 2
    s_add_u32 {s(sT2)}, {s(sT2)}, {s(sWv)}
    s_lshl_b32 {s(sT2)}, {s(sT2)}, 8
    s_add_u32 {s(sT2)}, {s(sT2)}, {WS_PROF}
    v_lshlrev_b32 {v(vT1)}, 2, {v(vL)}''')
    k.vm(f'buffer_store_dword {v(vT0)}, {v(vT1)}, {s(sWS, 4)}, {s(sT2)} offen')


def build():
    k = Stream()
    if PROF:
        k.i(f'{CLK} {s(96, 2)}')
    setup(k)
    if PROF:
        nstamp[0] = 1
        stampnames.append('start')
        k.i(f's_mov_b32 {s(sSTAMP)}, s96')
    stamp(k, 'kernarg')
    zt = zero_flags(k)
    xt = x_dma(k, 0)
    ct = conv_issue(k)
    if 'touch' in X:
        sh = 16 if 't64k' in X else 19
        k.i(f's_lshl_b32 {s(sT2)}, {s(sWv)}, {6 + sh}')
        k.i(f'v_lshlrev_b32 {v(vT0)}, {sh}, {v(vL)}')
        k.i(f'v_add_u32 {v(vT0)}, 0x3ff80, {v(vT0)}')
        k.i(f'v_add_u32 {v(vT1)}, {s(sT2)}, {v(vT0)}')
        k.vm(f'buffer_load_dword {v(ACCB + 28)}, {v(vT1)}, {s(sWS, 4)}, 0 offen')
        if sh == 16:
            k.i(f'v_add_u32 {v(vT1)}, {1 << 24}, {v(vT1)}')
            k.vm(f'buffer_load_dword {v(ACCB + 29)}, {v(vT1)}, {s(sWS, 4)}, 0 offen')
        k.i(f'v_lshlrev_b32 {v(vT0)}, {sh}, {v(vL)}')
        k.vm(f'buffer_load_dword {v(ACCB + 30)}, {v(vT0)}, {s(sOUT, 4)}, 0 offen')
    consts(k)
    set_ready(k, zt)
    gen_RD(k, True)
    gen_M(k)
    conv_finish(k, ct)
    stamp(k, 'pre done')
    for layer in range(2):
        tok = phase_a(k, layer, xt)
        p1, p2 = acc_init(k)
        if layer == 0:
            gen_G(p2)
        sync_T(k, layer, tok, p1, p2)
        stage2(k, layer)
        tok = ffn(k, layer)
        if layer == 0:
            p1, p2 = Stream(), Stream()
            gen_RD(p1, False)
            gen_M(p2)
            sync_X(k, tok, p1, p2)
            xt = x_dma(k, 1)
    dump_stamps(k)
    k.i('L_end:')
    k.i('s_endpgm')
    body, ins = render(k)
    hdr = open('interleave_layers__spectral_fnet__dense_activation_relu__prompt.s.ref').read()
    hdr = hdr[:hdr.index('; @launch')]
    out = hdr + f'; @launch grid=(224,1,1) block=(256,1,1) lds={LDS_SZ}\n'
    out += f'''.amdgcn_target "amdgcn-amd-amdhsa--gfx950"
.text
.globl {KN}
.p2align 8
.type {KN},@function
{KN}:
'''
    out += body
    out += f'''L_code_end:
.set CODE_LAST_LINE, L_code_end - {KN} - 128
.section .rodata,"a"
.p2align 6
.amdhsa_kernel {KN}
  .amdhsa_next_free_vgpr 512
  .amdhsa_next_free_sgpr 102
  .amdhsa_accum_offset 256
  .amdhsa_group_segment_fixed_size 0
  .amdhsa_kernarg_size 88
  .amdhsa_user_sgpr_count 2
  .amdhsa_user_sgpr_kernarg_segment_ptr 1
  .amdhsa_system_sgpr_workgroup_id_x 1
  .amdhsa_float_denorm_mode_32 3
.end_amdhsa_kernel
'''
    return out, ins


if __name__ == '__main__':
    out, ins = build()
    path = [x for x in sys.argv[1:] if not x.startswith('--')][0]
    open(path, 'w').write(out)
    import collections
    c = collections.Counter(x.cls for x in ins if isinstance(x, Ins))
    print(path, dict(c), 'nops', sum(1 for x in ins if isinstance(x, Ins) and x.mn == 's_nop'))
    if PROF:
        open(path + '.stamps', 'w').write('\n'.join(stampnames))
```
